```python
import torch

def _softmax(x, axis=-1):
    return torch.softmax(x, dim=axis)
def _gelu(x):
    return torch.nn.functional.gelu(x, approximate="tanh")
def _silu(x):
    return torch.nn.functional.silu(x)
def _sigmoid(x):
    return torch.sigmoid(x)
def _layernorm(x, axis=-1, eps=1e-5):
    m = x.mean(dim=axis, keepdim=True)
    v = x.var(dim=axis, keepdim=True, unbiased=False)
    return (x - m) / torch.sqrt(v + eps)
def _scatter_add(tgt, idx, src, axis=0):
    return tgt.clone().index_add_(axis, idx, src)
def _segment_sum(src, seg, n):
    out = torch.zeros((n,) + src.shape[1:], dtype=src.dtype)
    return out.index_add_(0, seg, src)
def _pad(x, pw):
    flat = tuple(v for pair in reversed(pw) for v in pair)
    return torch.nn.functional.pad(x, flat)

kernel_name = 'recurrent_scan__sliding_block__mixer_s_mlp__prompt'

def setup_inputs():

    _w = (lambda a: (lambda t: t.to(torch.bfloat16) if t.is_floating_point() else t)(torch.as_tensor(a)))
    def _A_setup():
        B, S, D = 1, 2048, 512
        return {
            "x": _w((lambda *s: torch.randn(*s, dtype=torch.bfloat16) * 0.05)(B, S, D)),
            "wqkv": _w((lambda *s: torch.randn(*s, dtype=torch.bfloat16) * 0.05)(D, 3 * D)),
            "wo": _w((lambda *s: torch.randn(*s, dtype=torch.bfloat16) * 0.05)(D, D)),
        }
    _A_in = _A_setup()

    def _B_setup():
        B, S, D, F = 1, 2048, 512, 1792
        return {
            "x":  _w((lambda *s: torch.randn(*s, dtype=torch.bfloat16) * 0.05)(B, S, D)),
            "w1": _w((lambda *s: torch.randn(*s, dtype=torch.bfloat16) * 3.2)(D, D) * (D ** -0.5)),
            "w2": _w((lambda *s: torch.randn(*s, dtype=torch.bfloat16) * 3.2)(D, D) * (D ** -0.5)),
            "w3": _w((lambda *s: torch.randn(*s, dtype=torch.bfloat16) * 3.2)(D, F) * (D ** -0.5)),
            "w4": _w((lambda *s: torch.randn(*s, dtype=torch.bfloat16) * 1.6)(F, D) * (F ** -0.5)),
        }
    _B_in = _B_setup()

    return {
        "A_x": _A_in["x"],
        "A_wqkv": _A_in["wqkv"],
        "A_wo": _A_in["wo"],
        "B_x": _B_in["x"],
        "B_w1": _B_in["w1"],
        "B_w2": _B_in["w2"],
        "B_w3": _B_in["w3"],
        "B_w4": _B_in["w4"],
    }

def reference(A_x, A_wqkv, A_wo, B_x, B_w1, B_w2, B_w3, B_w4):
    def _A_ref(x, wqkv, wo):
        B, S, D = x.shape
        H = 32; Dh = D // H; W = 256
        qkv = (lambda x, *d: x.permute(*d))((x @ wqkv).reshape(B, S, 3, H, Dh), 2, 0, 3, 1, 4)
        q, k, v = qkv[0], qkv[1], qkv[2]
        scores = torch.einsum("bhqd,bhkd->bhqk", q, k) * (Dh ** -0.5)
        idx = torch.arange(S)
        mask = (idx[:, None] - idx[None, :] >= 0) & (idx[:, None] - idx[None, :] < W)
        scores = torch.where(mask[None, None], scores, -1e9)
        p = _softmax(scores, axis=-1)
        o = torch.einsum("bhqk,bhkd->bhqd", p, v)
        return (lambda x, *d: x.permute(*d))(o, 0, 2, 1, 3).reshape(B, S, D) @ wo

    def _B_ref(x, w1, w2, w3, w4):
        B, S, D = x.shape
        h = _gelu(_layernorm(x, axis=-1) @ w1)
        c = D // 4
        g0 = _pad(h[:, :, 0*c:1*c], ((0, 0), (1, 0), (0, 0)))[:, :S, :]
        g1 = _pad(h[:, :, 1*c:2*c], ((0, 0), (0, 1), (0, 0)))[:, 1:, :]
        g2 = _pad(h[:, :, 2*c:3*c], ((0, 0), (2, 0), (0, 0)))[:, :S, :]
        g3 = _pad(h[:, :, 3*c:   ], ((0, 0), (0, 2), (0, 0)))[:, 2:, :]
        hs = torch.concatenate([g0, g1, g2, g3], axis=-1) @ w2
        x1 = x + hs
        h2 = _gelu(_layernorm(x1, axis=-1) @ w3) @ w4
        return x1 + h2

    x = A_x
    xn = _layernorm(x, axis=-1)
    s = _A_ref(xn, A_wqkv, A_wo)
    g = _silu(_B_ref(xn, B_w1, B_w2, B_w3, B_w4))
    return x + s * g
```

```python
class Asm:
    _uid = 0
    def __init__(self):
        self.L = []
    def __call__(self, s, *more):
        for x in (s,) + more:
            for ln in x.split("\n"):
                ln = ln.strip()
                if ln: self.L.append("    " + ln)
    def label(self, l): self.L.append(l + ":")
    def raw(self, s): self.L.append(s)
    def c(self, s): self.L.append("    ; " + s)
    def uid(self, p="L"):
        Asm._uid += 1
        return f"{p}_{Asm._uid}"
    STAMP = False
    def stamp(self, i):
        if Asm.STAMP: self(f"s_memtime s[{68+2*i}:{69+2*i}]")
    def text(self): return "\n".join(self.L) + "\n"

def v(i, n=1): return f"v{i}" if n == 1 else f"v[{i}:{i+n-1}]"
def a_(i, n=1): return f"a{i}" if n == 1 else f"a[{i}:{i+n-1}]"
def s(i, n=1): return f"s{i}" if n == 1 else f"s[{i}:{i+n-1}]"

def kernel_head(name):
    return f".globl {name}\n.p2align 8\n.type {name},@function\n{name}:\n"

def kernel_desc(name, vgpr, sgpr=96, accum=None):
    if accum is None: accum = min(256, (vgpr + 3) // 4 * 4)
    return f""".p2align 6
.amdhsa_kernel {name}
  .amdhsa_next_free_vgpr {vgpr}
  .amdhsa_next_free_sgpr {sgpr}
  .amdhsa_accum_offset {accum}
  .amdhsa_group_segment_fixed_size 0
  .amdhsa_kernarg_size 88
  .amdhsa_user_sgpr_count 2
  .amdhsa_user_sgpr_kernarg_segment_ptr 1
  .amdhsa_system_sgpr_workgroup_id_x 1
  .amdhsa_float_denorm_mode_32 3
.end_amdhsa_kernel
"""
```

```python
from asmlib import *
import struct
def f2u(x): return struct.unpack("<I", struct.pack("<f", x))[0]
def hexf(x): return f"{f2u(x):#x}"

WS_Q   = 0x000000
WS_K   = 0x200000
WS_V   = 0x400000
WS_HS  = 0x600000
WS_X1  = 0x800000
WS_O   = 0xA00000
WS_U   = 0xC00000
WS_ST  = 0x1400000
WS_CSA = 0x1600000
WS_CS3 = 0x1440000
WS_ST1 = 0x1480000
WS_S   = 0x1500000
WS_DBG = 0x2000000
WS_SIZE = 0x10000000

LOG2E = 1.4426950408889634
QSCALE = 0.25 * LOG2E
GK1 = -2.0 * 0.7978845608028654 * LOG2E
GK2 = GK1 * 0.044715
EPS = 1e-5

def srd(A, base, ptr, size):
    A(f"s_mov_b32 s{base}, s{ptr}")
    A(f"s_mov_b32 s{base+1}, s{ptr+1}")
    A(f"s_mov_b32 s{base+2}, {size:#x}")
    A(f"s_mov_b32 s{base+3}, 0x20000")

def gelu_regs(A, regs, tmp, vKP, vONE):
    n = len(regs)
    P = [tmp + 2*i for i in range(n)]
    for i, x in enumerate(regs): A(f"v_pk_mul_f32 {v(P[i],2)}, {v(x,2)}, {v(x,2)}")
    for i, x in enumerate(regs): A(f"v_pk_fma_f32 {v(P[i],2)}, {v(P[i],2)}, {v(vKP,2)}, {v(vKP,2)} op_sel:[0,0,1] op_sel_hi:[1,0,1]")
    for i, x in enumerate(regs): A(f"v_pk_mul_f32 {v(P[i],2)}, {v(P[i],2)}, {v(x,2)}")
    for i, x in enumerate(regs):
        A(f"v_exp_f32 {v(P[i])}, {v(P[i])}"); A(f"v_exp_f32 {v(P[i]+1)}, {v(P[i]+1)}")
    if n == 1: A("s_nop 0")
    for i, x in enumerate(regs): A(f"v_pk_add_f32 {v(P[i],2)}, {v(P[i],2)}, {v(vONE,2)}")
    for i, x in enumerate(regs):
        A(f"v_rcp_f32 {v(P[i])}, {v(P[i])}"); A(f"v_rcp_f32 {v(P[i]+1)}, {v(P[i]+1)}")
    if n == 1: A("s_nop 0")
    for i, x in enumerate(regs): A(f"v_pk_mul_f32 {v(x,2)}, {v(x,2)}, {v(P[i],2)}")

def colsum_partial(A, srdname, sOff, sStride, vLane4, vbuf, vC10, vC01, vout):
    for j in range(32):
        A(f"buffer_load_dword {v(vbuf+j)}, {v(vLane4)}, {srdname}, {sOff} offen")
        if j < 31: A(f"s_add_u32 {sOff}, {sOff}, {sStride}")

def colsum_reduce(A, vbuf, vC10, vC01, vout):
    a = [vout, vout+1, vout+2, vout+3]
    for i in range(4): A(f"v_mov_b32 {v(a[i])}, 0")
    for j in range(32):
        A(f"v_dot2_f32_bf16 {v(a[(j%2)*2])}, {v(vbuf+j)}, {v(vC10)}, {v(a[(j%2)*2])}")
        A(f"v_dot2_f32_bf16 {v(a[(j%2)*2+1])}, {v(vbuf+j)}, {v(vC01)}, {v(a[(j%2)*2+1])}")
    A("s_nop 2")
    A(f"v_add_f32 {v(a[0])}, {v(a[0])}, {v(a[2])}")
    A(f"v_add_f32 {v(a[1])}, {v(a[1])}, {v(a[3])}")

def wave_reduce_lane63(A, regs):
    steps = ["row_shr:1 row_mask:0xf bank_mask:0xf", "row_shr:2 row_mask:0xf bank_mask:0xf", "row_shr:4 row_mask:0xf bank_mask:0xf",
             "row_shr:8 row_mask:0xf bank_mask:0xf", "row_bcast:15 row_mask:0xa bank_mask:0xf", "row_bcast:31 row_mask:0xc bank_mask:0xf"]
    for st in steps:
        for r in regs:
            A(f"v_add_f32_dpp {v(r)}, {v(r)}, {v(r)} {st}")
        if len(regs) < 3: A("s_nop 1")
```

```python
from common import *

class Seg:
    def __init__(self, xbase, nks, ks0, nsteps, wsrd, wstride, order, acc):
        self.xbase, self.nks, self.ks0, self.nsteps, self.wsrd, self.wstride, self.order, self.acc = xbase, nks, ks0, nsteps, wsrd, wstride, order, acc

def gemm64(A, segs, P, srdWS, sRT, sCT, sWave, sLds, vLane, vX, vWf, vT, sT, pre_hook=None):
    vL16, vWg, vWaN, vWaP = vT, vT+1, vT+2, vT+4
    t0, t1 = vT+6, vT+7
    l = vLane
    A(f"v_lshlrev_b32 {v(vL16)}, 4, {v(l)}")
    A(f"v_bfe_u32 {v(t0)}, {v(l)}, 4, 1"); A(f"v_lshlrev_b32 {v(t0)}, 2, {v(t0)}")
    A(f"v_and_b32 {v(t1)}, 7, {v(l)}"); A(f"v_xor_b32 {v(t0)}, {v(t0)}, {v(t1)}"); A(f"v_lshlrev_b32 {v(t0)}, 4, {v(t0)}")
    A(f"v_lshrrev_b32 {v(t1)}, 3, {v(l)}"); A(f"v_lshl_add_u32 {v(vWg)}, {v(t1)}, 10, {v(t0)}")
    orders = set(s_.order for s_ in segs)
    A(f"v_bfe_u32 {v(t0)}, {v(l)}, 4, 1"); A(f"v_lshlrev_b32 {v(t0)}, 1, {v(t0)}")
    A(f"v_bfe_u32 {v(t1)}, {v(l)}, 1, 1"); A(f"v_add_u32 {v(t0)}, {v(t0)}, {v(t1)}")
    A(f"v_bfe_u32 {v(t1)}, {v(l)}, 3, 1"); A(f"v_lshlrev_b32 {v(t1)}, 2, {v(t1)}")
    A(f"v_xor_b32 {v(t0)}, {v(t0)}, {v(t1)}")
    A(f"v_lshlrev_b32 {v(t0)}, 4, {v(t0)}")
    A(f"v_and_b32 {v(t1)}, 1, {v(l)}"); A(f"v_lshl_add_u32 {v(t0)}, {v(t1)}, 3, {v(t0)}")
    A(f"v_add_u32 {v(t0)}, {sLds}, {v(t0)}")
    for (o, reg, sh) in (('nat', vWaN, 3), ('perm', vWaP, 2)):
        if o not in orders: continue
        A(f"v_lshrrev_b32 {v(t1)}, 5, {v(l)}"); A(f"v_lshlrev_b32 {v(t1)}, {sh}, {v(t1)}")
        A(f"v_bfe_u32 {v(reg+1)}, {v(l)}, 2, 2"); A(f"v_add_u32 {v(t1)}, {v(t1)}, {v(reg+1)}")
        A(f"v_lshl_add_u32 {v(reg)}, {v(t1)}, 7, {v(t0)}")
        A(f"v_xor_b32 {v(reg+1)}, 64, {v(reg)}")
    steps = []
    for si, sg in enumerate(segs):
        for j in range(sg.nsteps): steps.append((si, j))
    T = len(steps)
    sX0, sX1, sW, sTmp = f"s{sT}", f"s{sT+1}", f"s{sT+2}", f"s{sT+3}"
    cur_seg = [-1]
    def seg_init(si):
        sg = segs[si]
        A(f"s_lshl_b32 {sX0}, {sRT}, 1"); A(f"s_mul_i32 {sX0}, {sX0}, {sg.nks}"); A(f"s_add_u32 {sX0}, {sX0}, {sg.ks0}")
        A(f"s_lshl_b32 {sX0}, {sX0}, 10"); A(f"s_add_u32 {sX0}, {sX0}, {sg.xbase:#x}")
        A(f"s_add_u32 {sX1}, {sX0}, {sg.nks*1024:#x}")
        A(f"s_lshl_b32 {sW}, {sg.ks0}, 14"); A(f"s_lshl_b32 {sTmp}, {sCT}, 7"); A(f"s_add_u32 {sW}, {sW}, {sTmp}")
    def issue(t):
        si, j = steps[t]
        sg = segs[si]
        if si != cur_seg[0]:
            seg_init(si); cur_seg[0] = si
        slot = t % P
        xo = (j % 4) * 1024
        A(f"buffer_load_dwordx4 {v(vX+8*slot,4)}, {v(vL16)}, {srdWS}, {sX0} offen offset:{xo}")
        A(f"buffer_load_dwordx4 {v(vX+8*slot+4,4)}, {v(vL16)}, {srdWS}, {sX1} offen offset:{xo}")
        if j % 4 == 3:
            A(f"s_add_u32 {sX0}, {sX0}, 4096"); A(f"s_add_u32 {sX1}, {sX1}, 4096")
        A(f"s_add_u32 m0, {sLds}, {slot*2048}")
        A(f"s_add_u32 {sTmp}, {sW}, 8192")
        A(f"buffer_load_dwordx4 {v(vWg)}, {sg.wsrd}, {sW} offen lds")
        A(f"s_add_u32 m0, m0, 1024")
        A(f"s_add_u32 {sW}, {sW}, 16384")
        A(f"buffer_load_dwordx4 {v(vWg)}, {sg.wsrd}, {sTmp} offen lds")
    def reads(t, f):
        si, j = steps[t]; sg = segs[si]
        reg = vWaN if sg.order == 'nat' else vWaP
        es = 4 if sg.order == 'nat' else 8
        slot = t % P
        return [f"ds_read_b64_tr_b16 {v(f+4*cb+2*e2,2)}, {v(reg+cb)} offset:{slot*2048 + es*e2*128}" for cb in range(2) for e2 in range(2)]
    first = set()
    def mf(t, f):
        si, j = steps[t]; sg = segs[si]
        slot = t % P
        L = []
        for (b, cb) in ((0,0),(1,0),(0,1),(1,1)):
            d = v(sg.acc + 16*(2*b+cb), 16)
            c = d if (sg.acc in first) else "0"
            L.append(f"v_mfma_f32_32x32x16_bf16 {d}, {v(f+4*cb,4)}, {v(vX+8*slot+4*b,4)}, {c}")
        first.add(sg.acc)
        return L
    issued = 0
    for t in range(min(P, T)):
        issue(t); issued += 1
    extra = 0
    if pre_hook: extra = pre_hook()
    F = [vWf, vWf + 8]
    A(f"s_waitcnt vmcnt({min(63, 4*(issued-1) + extra)})")
    for r in reads(0, F[0]): A(r)
    for t in range(T):
        cur, nxt = F[t % 2], F[(t+1) % 2]
        M = mf(t, cur)
        if t + 1 < T:
            allowed = 4 * (issued - (t + 2)) + (extra if issued <= min(P, T) else 0)
            n_after = 4 * (issued - (t + 2))
            if t + 1 < min(P, T): n_after += extra
            A(f"s_waitcnt vmcnt({min(63, n_after)}) lgkmcnt(0)")
            R = reads(t + 1, nxt)
            A(M[0]); A(R[0]); A(R[1]); A(M[1]); A(R[2]); A(R[3]); A(M[2]); A(M[3])
        else:
            A("s_waitcnt lgkmcnt(0)")
            for m in M: A(m)
        if issued < T:
            issue(issued); issued += 1

def reduce_scatter(A, accs, sWave, sLds, region, vLane, vT, nbar_label=None):
    l16 = vT
    A(f"v_lshlrev_b32 {v(l16)}, 4, {v(vLane)}")
    A(f"v_add_u32 {v(vT+1)}, {sLds}, {v(l16)}")
    end = A.uid("rs_end")
    labels = [A.uid("rs_w") for _ in range(4)]
    for w in range(1, 4):
        A(f"s_cmp_eq_u32 {sWave}, {w}"); A(f"s_cbranch_scc1 {labels[w]}")
    res = [a for a in accs]
    for w in range(4):
        if w: A.label(labels[w])
        for ai, acc in enumerate(accs):
            slot = 0
            for q in range(4):
                if q == w: continue
                for j in range(4):
                    A(f"ds_write_b128 {v(vT+1)}, {v(acc+16*q+4*j,4)} offset:{ai*12288 + slot*4096 + j*1024}")
                slot += 1
        A("s_waitcnt lgkmcnt(0)")
        A("s_barrier")
        for ai, acc in enumerate(accs):
            tmpq = [q for q in range(4) if q != w]
            k = 0
            for u in range(4):
                if u == w: continue
                slot = w if w < u else w - 1
                off = ai*12288 + slot*4096
                A(f"v_add_u32 {v(vT+2)}, {((u - w) * region) & 0xffffffff:#x}, {v(vT+1)}")
                for j in range(4):
                    A(f"ds_read_b128 {v(acc+16*tmpq[k]+4*j,4)}, {v(vT+2)} offset:{off + j*1024}")
                k += 1
            A("s_waitcnt lgkmcnt(0)")
            for j in range(0, 16, 2):
                A(f"v_pk_add_f32 {v(acc+16*tmpq[0]+j,2)}, {v(acc+16*tmpq[0]+j,2)}, {v(acc+16*tmpq[1]+j,2)}")
                A(f"v_pk_add_f32 {v(acc+16*tmpq[2]+j,2)}, {v(acc+16*tmpq[2]+j,2)}, {v(acc+16*w+j,2)}")
            for j in range(0, 16, 2):
                A(f"v_pk_add_f32 {v(acc+j,2)}, {v(acc+16*tmpq[0]+j,2)}, {v(acc+16*tmpq[2]+j,2)}")
        if w < 3: A(f"s_branch {end}")
    A.label(end)
    return res
```

```python
from asmlib import *

STAGE = 32768
XOFF = 0
WOFF = 16384

def loader_setup(A, xmode, vXe, vXo, vW, vtmp, wstride):
    l = vtmp; t = vtmp + 1; t2 = vtmp + 2
    A(f"v_and_b32 {v(l)}, 63, v0")
    if xmode == 'row':
        A(f"v_lshrrev_b32 {v(t)}, 3, {v(l)}")
        A(f"v_lshlrev_b32 {v(t)}, 10, {v(t)}")
        A(f"v_lshrrev_b32 {v(t2)}, 4, {v(l)}")
        A(f"v_and_b32 {v(vXe)}, 7, {v(l)}")
        A(f"v_xor_b32 {v(vXe)}, {v(vXe)}, {v(t2)}")
        A(f"v_xor_b32 {v(vXo)}, 4, {v(vXe)}")
        A(f"v_lshl_add_u32 {v(vXe)}, {v(vXe)}, 4, {v(t)}")
        A(f"v_lshl_add_u32 {v(vXo)}, {v(vXo)}, 4, {v(t)}")
    else:
        A(f"v_lshlrev_b32 {v(vXe)}, 4, {v(l)}")
    A(f"v_lshrrev_b32 {v(t2)}, 4, {v(l)}")
    A(f"v_lshlrev_b32 {v(t)}, 2, {v(t2)}")
    A(f"v_and_b32 {v(vW)}, 15, {v(l)}")
    A(f"v_xor_b32 {v(vW)}, {v(vW)}, {v(t)}")
    A(f"v_lshlrev_b32 {v(vW)}, 4, {v(vW)}")
    A(f"v_mul_lo_u32 {v(t2)}, {v(t2)}, {wstride}")
    A(f"v_add_u32 {v(vW)}, {v(vW)}, {v(t2)}")

def loader_issue_chunk(A, xmode, stage, srdX, srdW, vXe, vXo, vW, sXoff, sWoff, sWstep, sLdsX, sLdsW, stmp):
    if xmode == 'row':
        for j in range(4):
            if j == 0:
                A(f"s_add_u32 m0, {sLdsX}, {stage*STAGE + XOFF}")
                A(f"s_mov_b32 {stmp}, {sXoff}")
            else:
                A(f"s_add_u32 m0, m0, 1024")
                A(f"s_add_u32 {stmp}, {stmp}, 8192")
            A(f"buffer_load_dwordx4 {v(vXe if j % 2 == 0 else vXo)}, {srdX}, {stmp} offen lds")
    else:
        A(f"s_add_u32 m0, {sLdsX}, {stage*STAGE + XOFF}")
        A("s_nop 0")
        for j in range(4):
            A(f"buffer_load_dwordx4 {v(vXe)}, {srdX}, {sXoff} offen offset:{j*1024} lds")
    for j in range(4):
        if j == 0:
            A(f"s_add_u32 m0, {sLdsW}, {stage*STAGE + WOFF}")
            A(f"s_mov_b32 {stmp}, {sWoff}")
        else:
            A(f"s_add_u32 m0, m0, 1024")
            A(f"s_add_u32 {stmp}, {stmp}, {sWstep}")
        A(f"buffer_load_dwordx4 {v(vW)}, {srdW}, {stmp} offen lds")

def compute_setup(A, xmode, sWr, sWc, vXa, vWa, vtmp):
    l = vtmp; t = vtmp + 1; t2 = vtmp + 2; t3 = vtmp + 3
    A(f"v_and_b32 {v(l)}, 63, v0")
    if xmode == 'row':
        A(f"v_and_b32 {v(t)}, 31, {v(l)}")
        A(f"v_lshrrev_b32 {v(t2)}, 5, {v(l)}")
        A(f"v_bfe_u32 {v(t3)}, {v(l)}, 1, 3")
        A(f"v_xor_b32 {v(t2)}, {v(t2)}, {v(t3)}")
        A(f"v_lshlrev_b32 {v(t)}, 7, {v(t)}")
        A(f"s_lshl_b32 s90, {sWr}, 13")
        A(f"v_add_u32 {v(t)}, s90, {v(t)}")
        for ks in range(4):
            A(f"v_xor_b32 {v(vXa+ks)}, {2*ks}, {v(t2)}")
            A(f"v_lshl_add_u32 {v(vXa+ks)}, {v(vXa+ks)}, 4, {v(t)}")
    else:
        A(f"v_lshlrev_b32 {v(t)}, 4, {v(l)}")
        A(f"s_lshl_b32 s90, {sWr}, 13")
        A(f"v_add_u32 {v(vXa)}, s90, {v(t)}")
    A(f"v_bfe_u32 {v(t)}, {v(l)}, 2, 2")
    A(f"v_lshrrev_b32 {v(t2)}, 5, {v(l)}")
    A(f"v_lshlrev_b32 {v(t2)}, {3 if xmode == 'row' else 2}, {v(t2)}")
    A(f"v_add_u32 {v(t2)}, {v(t2)}, {v(t)}")
    A(f"v_lshlrev_b32 {v(t2)}, 8, {v(t2)}")
    A(f"v_bfe_u32 {v(t3)}, {v(l)}, 4, 1")
    A(f"v_lshlrev_b32 {v(t3)}, 1, {v(t3)}")
    A(f"v_bfe_u32 {v(vWa)}, {v(l)}, 1, 1")
    A(f"v_add_u32 {v(t3)}, {v(t3)}, {v(vWa)}")
    A(f"s_lshl_b32 s90, {sWc}, 3")
    A(f"v_add_u32 {v(t3)}, s90, {v(t3)}")
    A(f"v_lshlrev_b32 {v(t)}, 2, {v(t)}")
    A(f"v_xor_b32 {v(t3)}, {v(t3)}, {v(t)}")
    A(f"v_xor_b32 {v(t)}, 4, {v(t3)}")
    A(f"v_and_b32 {v(l)}, 1, {v(l)}")
    A(f"v_lshl_add_u32 {v(t2)}, {v(l)}, 3, {v(t2)}")
    A(f"v_add_u32 {v(t2)}, {WOFF}, {v(t2)}")
    A(f"v_lshl_add_u32 {v(vWa)}, {v(t3)}, 4, {v(t2)}")
    A(f"v_lshl_add_u32 {v(vWa+1)}, {v(t)}, 4, {v(t2)}")

def frag_reads(A, xmode, ks, stage_off, vXa, vWa, fX, fW):
    for b in range(2):
        if xmode == 'row':
            A(f"ds_read_b128 {v(fX+4*b,4)}, {v(vXa+ks)} offset:{stage_off + b*4096}")
        else:
            A(f"ds_read_b128 {v(fX+4*b,4)}, {v(vXa)} offset:{stage_off + b*4096 + ks*1024}")
    estep = 4 if xmode == 'row' else 8
    for cb in range(2):
        for e2 in range(2):
            A(f"ds_read_b64_tr_b16 {v(fW+4*cb+2*e2,2)}, {v(vWa+cb)} offset:{stage_off + (16*ks + estep*e2)*256}")

def mfmas(A, acc, fX, fW, swap=False, first=False):
    for b in range(2):
        for cb in range(2):
            d = v(acc + 16*(2*b+cb), 16)
            c = "0" if first else d
            if not swap:
                A(f"v_mfma_f32_32x32x16_bf16 {d}, {v(fW+4*cb,4)}, {v(fX+4*b,4)}, {c}")
            else:
                A(f"v_mfma_f32_32x32x16_bf16 {d}, {v(fX+4*b,4)}, {v(fW+4*cb,4)}, {c}")


def frag_read_list(xmode, ks, stage_off, vXa, vWa, fX, fW):
    L = []
    estep = 4 if xmode == 'row' else 8
    def X(b):
        if xmode == 'row':
            return f"ds_read_b128 {v(fX+4*b,4)}, {v(vXa+ks)} offset:{stage_off + b*4096}"
        return f"ds_read_b128 {v(fX+4*b,4)}, {v(vXa)} offset:{stage_off + b*4096 + ks*1024}"
    def W(cb, e2):
        return f"ds_read_b64_tr_b16 {v(fW+4*cb+2*e2,2)}, {v(vWa+cb)} offset:{stage_off + (16*ks + estep*e2)*256}"
    return [W(0,0), W(0,1), X(0), X(1), W(1,0), W(1,1)]

def mfma_list(acc, fX, fW, swap=False, first=False):
    L = []
    for (b, cb) in ((0,0),(1,0),(0,1),(1,1)):
        d = v(acc + 16*(2*b+cb), 16)
        c = "0" if first else d
        if not swap: L.append(f"v_mfma_f32_32x32x16_bf16 {d}, {v(fW+4*cb,4)}, {v(fX+4*b,4)}, {c}")
        else: L.append(f"v_mfma_f32_32x32x16_bf16 {d}, {v(fX+4*b,4)}, {v(fW+4*cb,4)}, {c}")
    return L

def compute_loop(A, xmode, acc, vXa, vWa, f0, f1, swap=False, nchunk=8, hook=None):
    nx = 4 if xmode == 'row' else 1
    cur_hi = 0
    def set_hi(hi):
        nonlocal cur_hi
        if hi != cur_hi:
            d = (hi - cur_hi) * 65536
            for i in range(nx):
                A(f"v_add_u32 {v(vXa+i)}, {d & 0xffffffff:#x}, {v(vXa+i)}")
            for i in range(2):
                A(f"v_add_u32 {v(vWa+i)}, {d & 0xffffffff:#x}, {v(vWa+i)}")
            cur_hi = hi
    F = [f0, f1]
    A("s_barrier")
    for r in frag_read_list(xmode, 0, 0, vXa, vWa, F[0], F[0]+8): A(r)
    step = 0
    for ch in range(nchunk):
        for ks in range(4):
            cur = F[step % 2]; nxt = F[(step + 1) % 2]
            last = (ch == nchunk - 1 and ks == 3)
            M = mfma_list(acc, cur, cur + 8, swap, first=(step == 0))
            A("s_waitcnt lgkmcnt(0)")
            if ks < 3:
                R = frag_read_list(xmode, ks + 1, ((ch % 4) % 2) * 32768, vXa, vWa, nxt, nxt + 8)
                A(M[0]); A(R[0]); A(R[1]); A(M[1]); A(R[2]); A(R[3]); A(M[2]); A(R[4]); A(R[5]); A(M[3])
            else:
                A(M[0])
                A("s_barrier")
                if not last:
                    st = (ch + 1) % 4
                    set_hi(st // 2)
                    R = frag_read_list(xmode, 0, (st % 2) * 32768, vXa, vWa, nxt, nxt + 8)
                    A(R[0]); A(R[1]); A(M[1]); A(R[2]); A(R[3]); A(M[2]); A(R[4]); A(R[5]); A(M[3])
                else:
                    A(M[1]); A(M[2]); A(M[3])
            if hook: hook(ch, ks)
            step += 1

def loader_loop(A, xmode, srdX, srdW, vXe, vXo, vW, sXbase, sWbase, sXadv, sWadv, sWstep, sLdsX, sLdsW, stmp, sRot, sXoff, sWoff,
                nchunk=8, hook=None, hook0=None, hook1=None):
    def issue(ch):
        A(f"s_mul_i32 {sXoff}, {sRot}, {sXadv}"); A(f"s_add_u32 {sXoff}, {sXoff}, {sXbase}")
        A(f"s_mul_i32 {sWoff}, {sRot}, {sWadv}"); A(f"s_add_u32 {sWoff}, {sWoff}, {sWbase}")
        loader_issue_chunk(A, xmode, ch % 4, srdX, srdW, vXe, vXo, vW, sXoff, sWoff, sWstep, sLdsX, sLdsW, stmp)
        if ch + 1 < nchunk:
            A(f"s_add_u32 {sRot}, {sRot}, 1"); A(f"s_and_b32 {sRot}, {sRot}, {nchunk-1}")
    issue(0); issue(1)
    if hook0: hook0()
    A("s_waitcnt vmcnt(8)")
    A("s_barrier")
    if hook1: hook1()
    issue(2); issue(3)
    issued = 4
    for ch in range(nchunk):
        if ch + 1 < nchunk:
            out = issued - (ch + 2)
            A(f"s_waitcnt vmcnt({8*out})")
        A("s_barrier")
        if issued < nchunk:
            issue(issued); issued += 1
        if hook: hook(ch)
```

```python
from common import *
from gemm_core import *

LDS_A = 131072 + 2048
def gen_A(stamp=False):
    A = Asm()
    N = "kA"
    A("s_cmp_ge_u32 s2, 256"); A(f"s_cbranch_scc1 {N}_done")
    A("s_load_dwordx4 s[4:7], s[0:1], 0")
    A("s_load_dwordx2 s[16:17], s[0:1], 32")
    A("s_load_dwordx2 s[18:19], s[0:1], 48")
    A("s_load_dwordx2 s[20:21], s[0:1], 72")
    A("s_load_dwordx2 s[22:23], s[0:1], 80")
    A("s_and_b32 s24, s2, 7"); A("s_lshr_b32 s25, s2, 3")
    A("s_lshr_b32 s26, s25, 4"); A("s_lshl_b32 s27, s24, 1"); A("s_add_u32 s26, s26, s27")
    A("s_and_b32 s27, s25, 15")
    A("v_lshrrev_b32 v1, 6, v0"); A("v_and_b32 v2, 63, v0"); A("v_readfirstlane_b32 s33, v1")
    A("s_lshr_b32 s37, s25, 4"); A("s_lshl_b32 s37, s37, 2"); A("s_add_u32 s37, s37, s27"); A("s_add_u32 s37, s37, s24"); A("s_and_b32 s37, s37, 7")
    A("s_cmp_lt_u32 s27, 12")
    A("s_movk_i32 s34, 1024"); A("s_cselect_b32 s34, 3072, s34")
    A("s_mov_b32 s14, 0x80000"); A("s_cselect_b32 s14, 0x180000, s14")
    A("s_cselect_b32 s35, 0, 12"); A("s_sub_u32 s35, s27, s35"); A("s_lshl_b32 s35, s35, 8")
    A("s_waitcnt lgkmcnt(0)")
    A("s_cmp_lt_u32 s27, 12")
    A("s_cselect_b32 s12, s6, s16"); A("s_cselect_b32 s13, s7, s17"); A("s_mov_b32 s15, 0x20000")
    srd(A, 8, 4, 0x200000)
    srd(A, 28, 22, WS_SIZE)
    A("s_cmp_ge_u32 s33, 4"); A(f"s_cbranch_scc1 {N}_loader")
    A("v_lshlrev_b32 v3, 2, v2")
    A("s_cmp_ge_u32 s33, 2"); A(f"s_cbranch_scc1 {N}_xstat")
    A("s_cmp_eq_u32 s33, 0")
    A("s_cselect_b32 s40, s12, s18"); A("s_cselect_b32 s41, s13, s19")
    A("s_mov_b32 s42, 0x1C0000"); A("s_cselect_b32 s42, s14, s42"); A("s_mov_b32 s43, 0x20000")
    A("s_movk_i32 s44, 3584"); A("s_cselect_b32 s44, s34, s44")
    A("s_lshl_b32 s45, s27, 8")
    A("s_cmp_eq_u32 s33, 0"); A("s_cselect_b32 s45, s35, s45")
    A(f"s_mov_b32 s46, {WS_CS3:#x}"); A(f"s_cselect_b32 s46, {WS_CSA:#x}, s46")
    A("s_lshl_b32 s47, s26, 5"); A("s_mul_i32 s47, s47, s44"); A("s_add_u32 s47, s47, s45")
    colsum_partial(A, "s[40:43]", "s47", "s44", 3, 64, None, None, None)
    A("v_mov_b32 v4, 0x3f80"); A("v_mov_b32 v5, 0x3f800000")
    A("s_lshl_b32 s47, s27, 4"); A("s_add_u32 s47, s47, s26"); A("s_lshl_b32 s47, s47, 9"); A("s_add_u32 s47, s47, s46")
    A("v_lshlrev_b32 v6, 3, v2")
    A("s_waitcnt vmcnt(0)")
    colsum_reduce(A, 64, 4, 5, 100)
    A("buffer_store_dwordx2 v[100:101], v6, s[28:31], s47 offen sc0 sc1")
    A(f"s_branch {N}_svc_done")
    A.label(f"{N}_xstat")
    A("s_lshl_b32 s47, s26, 7"); A("s_lshl_b32 s46, s27, 3"); A("s_add_u32 s47, s47, s46")
    A("s_sub_u32 s46, s33, 2"); A("s_lshl_b32 s46, s46, 2"); A("s_add_u32 s47, s47, s46")
    A("s_lshl_b32 s46, s47, 10")
    A("v_lshlrev_b32 v6, 4, v2")
    for j in range(4):
        A(f"buffer_load_dwordx4 {v(64+4*j,4)}, v6, s[8:11], s46 offen offset:{j*1024}")
    A("v_mov_b32 v4, 0x3f803f80")
    for j in range(8): A(f"v_mov_b32 {v(96+j)}, 0")
    A("s_waitcnt vmcnt(0)")
    for q in range(4):
        for j in range(4):
            A(f"v_dot2_f32_bf16 {v(96+j)}, {v(64+4*j+q)}, v4, {v(96+j)}")
            A(f"v_dot2_f32_bf16 {v(100+j)}, {v(64+4*j+q)}, {v(64+4*j+q)}, {v(100+j)}")
    A("s_nop 2")
    wave_reduce_lane63(A, list(range(96, 104)))
    A(f"v_mov_b32 v5, {hexf(EPS)}")
    for j in range(4): A(f"v_mul_f32 {v(104+4*j)}, {hexf(1/512)}, {v(96+j)}")
    for j in range(4): A(f"v_mul_f32 {v(107+4*j)}, {hexf(1/512)}, {v(100+j)}")
    for j in range(4): A(f"v_fma_f32 {v(107+4*j)}, -{v(104+4*j)}, {v(104+4*j)}, {v(107+4*j)}")
    for j in range(4): A(f"v_max_f32 {v(107+4*j)}, 0, {v(107+4*j)}")
    for j in range(4): A(f"v_add_f32 {v(105+4*j)}, v5, {v(107+4*j)}")
    for j in range(4): A(f"v_rsq_f32 {v(105+4*j)}, {v(105+4*j)}")
    for j in range(4): A(f"v_mul_f32 {v(106+4*j)}, {v(105+4*j)}, {v(105+4*j)}")
    for j in range(4): A(f"v_fma_f32 {v(106+4*j)}, {v(106+4*j)}, {v(107+4*j)}, v5")
    for j in range(4): A(f"v_rsq_f32 {v(106+4*j)}, {v(106+4*j)}")
    A("s_nop 0")
    for j in range(4): A(f"v_mul_f32 {v(106+4*j)}, {v(106+4*j)}, {v(105+4*j)}")
    A("s_lshl_b32 s46, s47, 4"); A(f"s_add_u32 s46, s46, {WS_ST:#x}")
    A("v_mov_b32 v6, 0")
    A("s_mov_b64 s[48:49], exec"); A("s_mov_b32 exec_lo, 0"); A("s_mov_b32 exec_hi, 0x80000000")
    for j in range(4):
        A(f"buffer_store_dwordx4 {v(104+4*j,4)}, v6, s[28:31], s46 offen offset:{16*j} sc0 sc1")
    A("s_mov_b64 exec, s[48:49]")
    A.label(f"{N}_svc_done")
    A("s_lshr_b32 s38, s33, 1"); A("s_and_b32 s39, s33, 1")
    compute_setup(A, 'row', "s38", "s39", 8, 12, 4)
    A("v_lshrrev_b32 v4, 2, v2"); A("v_and_b32 v5, 3, v2")
    A("s_lshr_b32 s50, s27, 2"); A("s_and_b32 s51, s27, 3"); A("s_lshl_b32 s51, s51, 3"); A("s_lshl_b32 s51, 1, s51")
    A("v_cmp_eq_u32 s[52:53], s26, v4"); A("v_cmp_eq_u32 s[54:55], s50, v5")
    A("v_mov_b32 v6, 0x01010101"); A("v_mov_b32 v7, s51")
    A("v_cndmask_b32 v48, 0, v6, s[52:53]"); A("v_cndmask_b32 v49, 0, v7, s[54:55]")
    A("v_or_b32 v48, v48, v49")
    def hook(ch, ks):
        if ch == 0 and ks == 2: A("s_waitcnt vmcnt(0)")
        if ch == 0 and ks == 3:
            l = A.uid(N)
            A("s_cmp_lg_u32 s33, 0"); A(f"s_cbranch_scc1 {l}")
            A("s_lshl_b32 s46, s26, 4"); A("s_add_u32 s46, s46, s27")
            A("v_mov_b32 v49, s46"); A("v_mov_b32 v50, 1")
            A("s_mov_b64 s[48:49], exec"); A("s_mov_b64 exec, 1")
            A("global_store_byte v49, v50, s[20:21] sc0 sc1")
            A("s_mov_b64 exec, s[48:49]")
            A.label(l)
        if ch == 4 and ks == 3:
            A("global_load_dword v49, v3, s[20:21] sc0 sc1")
        if ch == 5 and ks == 3:
            ok = A.uid(N); rt = A.uid(N)
            A("s_mov_b32 s46, 0x40000")
            A.label(rt)
            A("s_waitcnt vmcnt(0)")
            A("v_and_b32 v49, v49, v48")
            A("v_cmp_ne_u32 vcc, v49, v48")
            A(f"s_cbranch_vccz {ok}")
            A("s_sub_u32 s46, s46, 1"); A("s_cmp_eq_u32 s46, 0"); A(f"s_cbranch_scc1 {ok}")
            A("s_sleep 2")
            A("global_load_dword v49, v3, s[20:21] sc0 sc1")
            A(f"s_branch {rt}")
            A.label(ok)
            A("v_and_b32 v50, 31, v2"); A("v_lshlrev_b32 v50, 4, v50")
            A("s_lshl_b32 s46, s26, 7"); A("s_lshl_b32 s47, s38, 6"); A("s_add_u32 s46, s46, s47"); A("s_lshl_b32 s46, s46, 4"); A(f"s_add_u32 s46, s46, {WS_ST:#x}")
            A("buffer_load_dwordx4 v[128:131], v50, s[28:31], s46 offen sc0 sc1")
            A("buffer_load_dwordx4 v[132:135], v50, s[28:31], s46 offen offset:512 sc0 sc1")
            A("s_lshl_b32 s46, s27, 13"); A("s_lshl_b32 s47, s39, 8"); A("s_add_u32 s46, s46, s47"); A(f"s_add_u32 s46, s46, {WS_CSA:#x}")
            for j in range(16):
                A(f"buffer_load_dword {v(136+j)}, v3, s[28:31], s46 offen offset:{(j%8)*512} sc0 sc1")
                if j == 7: A("s_add_u32 s46, s46, 4096")
    compute_loop(A, 'row', 64, 8, 12, 16, 32, hook=hook)
    A("s_waitcnt vmcnt(0)")
    for j in range(1, 16, 2): A(f"v_add_f32 {v(136+j-1)}, {v(136+j-1)}, {v(136+j)}")
    for j in range(2, 16, 4): A(f"v_add_f32 {v(136+j-2)}, {v(136+j-2)}, {v(136+j)}")
    for j in range(4, 16, 8): A(f"v_add_f32 {v(136+j-4)}, {v(136+j-4)}, {v(136+j)}")
    A("v_add_f32 v136, v136, v144")
    A("s_lshl_b32 s46, s33, 8"); A("s_add_u32 s46, s46, 131072")
    A("v_add_u32 v50, s46, v3")
    A("ds_write_b32 v50, v136")
    A("v_lshrrev_b32 v51, 5, v2"); A("v_lshlrev_b32 v51, 4, v51"); A("v_add_u32 v51, s46, v51")
    A("s_waitcnt lgkmcnt(0)")
    for cb in range(2):
        for g in range(4):
            A(f"ds_read_b128 {v(16+16*cb+4*g,4)}, v51 offset:{cb*128+g*32}")
    A("s_lshr_b32 s50, s27, 2"); A("s_and_b32 s51, s27, 3")
    A(f"s_mov_b32 s52, {hexf(1.0)}"); A("s_cmp_eq_u32 s50, 0"); A(f"s_cselect_b32 s52, {hexf(QSCALE)}, s52")
    A("s_cmp_eq_u32 s50, 3"); A(f"s_cbranch_scc1 {N}_epi_h")
    for b in range(2):
        A(f"v_mul_f32 {v(52+2*b)}, s52, {v(129+4*b)}")
    for b in range(2):
        A(f"v_mul_f32 {v(53+2*b)}, -{v(128+4*b)}, {v(52+2*b)}".replace("v_mul_f32", "v_mul_f32_e64"))
    def apply_ln():
        for b in range(2):
            for cb in range(2):
                for j in range(8):
                    A(f"v_pk_mul_f32 {v(56+2*(j%4),2)}, {v(16+16*cb+2*j,2)}, {v(52+2*b,2)} op_sel:[0,1] op_sel_hi:[1,1]")
                    a = 64 + 16*(2*b+cb) + 2*j
                    A(f"v_pk_fma_f32 {v(a,2)}, {v(a,2)}, {v(52+2*b,2)}, {v(56+2*(j%4),2)} op_sel_hi:[1,0,1]")
    A("s_waitcnt lgkmcnt(0)")
    apply_ln()
    A("v_lshlrev_b32 v50, 4, v2")
    l = A.uid(N)
    A("s_cmp_lg_u32 s50, 2"); A(f"s_cbranch_scc1 {l}")
    A("v_bfe_u32 v4, v2, 2, 3"); A("v_lshlrev_b32 v4, 3, v4"); A("v_lshrrev_b32 v5, 5, v2"); A("v_lshl_add_u32 v4, v5, 2, v4")
    A("v_and_b32 v5, 3, v2"); A("v_add_u32 v4, v4, v5"); A("v_lshlrev_b32 v50, 4, v4")
    A.label(l)
    A("s_lshl_b32 s46, s50, 21")
    A("s_lshl_b32 s47, s51, 3"); A("s_lshl_b32 s53, s39, 2"); A("s_add_u32 s47, s47, s53"); A("s_lshl_b32 s47, s47, 16"); A("s_add_u32 s46, s46, s47")
    A("s_lshl_b32 s47, s26, 2"); A("s_lshl_b32 s53, s38, 1"); A("s_add_u32 s47, s47, s53"); A("s_lshl_b32 s47, s47, 10"); A("s_add_u32 s46, s46, s47")
    for b in range(2):
        for cb in range(2):
            a = 64 + 16*(2*b+cb)
            for half in range(2):
                d = 136 + 8*((2*b+cb) % 2) + 4*half
                for j in range(4):
                    A(f"v_cvt_pk_bf16_f32 {v(d+j)}, {v(a+8*half+2*j)}, {v(a+8*half+2*j+1)}")
                A(f"s_add_u32 s47, s46, {(2*cb+half)*65536 + b*1024}")
                A(f"buffer_store_dwordx4 {v(d,4)}, v50, s[28:31], s47 offen")
    A("s_endpgm")
    A.label(f"{N}_epi_h")
    A("s_and_b32 s53, s51, 1"); A("s_lshr_b32 s54, s51, 1"); A("s_add_u32 s54, s54, 1")
    A("s_sub_u32 s55, 0, s54"); A("s_cmp_eq_u32 s53, 0"); A("s_cselect_b32 s54, s54, s55")
    A("s_lshl_b32 s46, s26, 7"); A("s_lshl_b32 s47, s38, 6"); A("s_add_u32 s46, s46, s47"); A("s_add_u32 s46, s46, s54")
    A("v_and_b32 v4, 31, v2"); A("v_lshrrev_b32 v5, 5, v2"); A("v_lshlrev_b32 v5, 9, v5")
    for b in range(2):
        A(f"v_add_u32 {v(6)}, s46, v4")
        if b: A(f"v_add_u32 {v(6)}, 32, {v(6)}")
        A(f"v_mov_b32 {v(7)}, 0x800")
        A(f"v_cmp_lt_u32 vcc, {v(6)}, {v(7)}")
        A(f"v_mul_f32 {v(52+2*b)}, 1.0, {v(130+4*b)}")
        A(f"v_mul_f32_e64 {v(53+2*b)}, -{v(128+4*b)}, {v(130+4*b)}")
        A(f"v_cndmask_b32 {v(52+2*b)}, 0, {v(52+2*b)}, vcc")
        A(f"v_cndmask_b32 {v(53+2*b)}, 0, {v(53+2*b)}, vcc")
        A(f"v_and_b32 {v(6)}, 0x7ff, {v(6)}")
        A(f"v_lshrrev_b32 {v(7)}, 5, {v(6)}"); A(f"v_lshlrev_b32 {v(7)}, 15, {v(7)}")
        A(f"v_and_b32 {v(6)}, 31, {v(6)}"); A(f"v_lshl_add_u32 {v(6)}, {v(6)}, 4, {v(7)}")
        A(f"v_add_u32 {v(14+b)}, {v(6)}, v5")
    A("s_waitcnt lgkmcnt(0)")
    apply_ln()
    A(f"v_mov_b32 v4, {hexf(GK2)}"); A(f"v_mov_b32 v5, {hexf(GK1)}"); A("v_mov_b32 v6, 1.0"); A("v_mov_b32 v7, 1.0")
    A("s_lshl_b32 s47, s51, 3"); A("s_lshl_b32 s53, s39, 2"); A("s_add_u32 s47, s47, s53"); A("s_lshl_b32 s47, s47, 10"); A(f"s_add_u32 s46, s47, {WS_HS:#x}")
    for b in range(2):
        for cb in range(2):
            a = 64 + 16*(2*b+cb)
            for half in range(2):
                gelu_regs(A, [a+8*half+2*j for j in range(4)], 16, 4, 6)
                d = 136 + 8*((2*b+cb) % 2) + 4*half
                for j in range(4):
                    A(f"v_cvt_pk_bf16_f32 {v(d+j)}, {v(a+8*half+2*j)}, {v(a+8*half+2*j+1)}")
                A(f"s_add_u32 s47, s46, {(2*cb+half)*1024}")
                A(f"buffer_store_dwordx4 {v(d,4)}, {v(14+b)}, s[28:31], s47 offen")
    A("s_endpgm")
    A.label(f"{N}_loader")
    A("s_sub_u32 s38, s33, 4")
    loader_setup(A, 'row', 8, 9, 10, 4, "s34")
    A("s_lshl_b32 s40, s26, 7"); A("s_lshl_b32 s41, s38, 5"); A("s_add_u32 s40, s40, s41"); A("s_lshl_b32 s40, s40, 10")
    A("s_lshl_b32 s41, s38, 4"); A("s_mul_i32 s41, s41, s34"); A("s_add_u32 s41, s41, s35")
    A("s_lshl_b32 s42, s34, 2"); A("s_lshl_b32 s43, s34, 6")
    A("s_lshl_b32 s44, s38, 12"); A("s_lshl_b32 s45, s38, 12")
    loader_loop(A, 'row', "s[8:11]", "s[12:15]", 8, 9, 10, "s40", "s41", "128", "s43", "s42", "s44", "s45", "s46", "s37", "s47", "s48")
    A.label(f"{N}_done")
    A("s_endpgm")
    return A.text(), 152, LDS_A
```

```python
from common import *
from gemm64 import *

LDS_B = 49152 + 1024
NEGBIG = -1e30

def gen_B():
    A = Asm()
    N = "kB"
    A("s_cmp_ge_u32 s2, 768"); A(f"s_cbranch_scc1 {N}_done")
    A("s_load_dwordx2 s[4:5], s[0:1], 0")
    A("s_load_dwordx2 s[6:7], s[0:1], 40")
    A("s_load_dwordx2 s[22:23], s[0:1], 80")
    A("v_lshrrev_b32 v1, 6, v0"); A("v_and_b32 v2, 63, v0"); A("v_readfirstlane_b32 s33, v1")
    A("s_cmp_ge_u32 s2, 256"); A(f"s_cbranch_scc1 {N}_attn")
    A("s_and_b32 s24, s2, 7"); A("s_lshr_b32 s25, s2, 3")
    A("s_lshr_b32 s26, s25, 3"); A("s_lshl_b32 s27, s24, 2"); A("s_add_u32 s26, s26, s27")
    A("s_and_b32 s27, s25, 7")
    A("s_mul_i32 s34, s33, 12288")
    A("s_lshl_b32 s35, s33, 3")
    A("s_waitcnt lgkmcnt(0)")
    srd(A, 8, 4, 0x200000); srd(A, 12, 6, 0x80000); srd(A, 28, 22, WS_SIZE)
    ACC = 64; VX = 16; VWF = 128; VT = 4
    def pre():
        A("s_lshr_b32 s40, s33, 1"); A("s_and_b32 s41, s33, 1")
        A("s_lshl_b32 s42, s26, 6"); A("s_lshl_b32 s43, s40, 5"); A("s_add_u32 s42, s42, s43")
        A("s_lshl_b32 s43, s27, 6"); A("s_lshl_b32 s44, s41, 5"); A("s_add_u32 s43, s43, s44")
        A("v_and_b32 v12, 31, v2"); A("v_lshrrev_b32 v13, 5, v2")
        A("v_lshlrev_b32 v14, 10, v12"); A("v_lshl_add_u32 v14, v13, 3, v14")
        A("s_lshl_b32 s44, s42, 10"); A("s_lshl_b32 s45, s43, 1"); A("s_add_u32 s44, s44, s45")
        for g in range(4):
            A(f"buffer_load_dwordx2 {v(144+2*g,2)}, v14, s[8:11], s44 offen offset:{g*16}")
        A("v_lshlrev_b32 v15, 4, v12")
        A("s_lshl_b32 s45, s42, 4"); A(f"s_add_u32 s45, s45, {WS_ST:#x}")
        A("buffer_load_dwordx2 v[152:153], v15, s[28:31], s45 offen")
        return 5
    gemm64(A, [Seg(WS_HS, 32, "s35", 8, "s[12:15]", 1024, 'perm', ACC)], 6, "s[28:31]", "s26", "s27", "s33", "s34", 2, VX, VWF, VT, 50, pre_hook=pre)
    A("s_nop 15")
    reduce_scatter(A, [ACC], "s33", "s34", 12288, 2, VT)
    A("s_waitcnt vmcnt(0)")
    A("v_mul_f32_e64 v154, -v152, v153")
    A("v_mov_b32 v155, v154"); A("v_mov_b32 v152, v153")
    for g in range(4):
        for p_ in range(2):
            src = 144 + 2*g + p_
            A(f"v_lshlrev_b32 v16, 16, {v(src)}"); A(f"v_and_b32 v17, 0xffff0000, {v(src)}")
            a = ACC + 4*g + 2*p_
            A(f"v_pk_fma_f32 {v(a,2)}, v[16:17], v[152:153], {v(a,2)}")
            A(f"v_pk_add_f32 {v(a,2)}, {v(a,2)}, v[154:155]")
    A(f"v_pk_add_f32 v[18:19], {v(ACC,2)}, {v(ACC+2,2)}")
    A(f"v_pk_mul_f32 v[20:21], {v(ACC,2)}, {v(ACC,2)}")
    A(f"v_pk_fma_f32 v[20:21], {v(ACC+2,2)}, {v(ACC+2,2)}, v[20:21]")
    for j in range(4, 16, 2):
        A(f"v_pk_add_f32 v[18:19], v[18:19], {v(ACC+j,2)}")
        A(f"v_pk_fma_f32 v[20:21], {v(ACC+j,2)}, {v(ACC+j,2)}, v[20:21]")
    A("v_add_f32 v18, v18, v19"); A("v_add_f32 v19, v20, v21")
    A("v_mov_b32 v20, v18"); A("v_mov_b32 v21, v19"); A("s_nop 1")
    A("v_permlane32_swap_b32 v18, v20"); A("v_permlane32_swap_b32 v19, v21"); A("s_nop 1")
    A("v_add_f32 v18, v18, v20"); A("v_add_f32 v19, v19, v21")
    for j in range(8): A(f"v_cvt_pk_bf16_f32 {v(24+j)}, {v(ACC+2*j)}, {v(ACC+2*j+1)}")
    A("s_lshl_b32 s44, s26, 1"); A("s_add_u32 s44, s44, s40"); A("s_lshl_b32 s44, s44, 5")
    A("s_lshl_b32 s45, s27, 2"); A("s_add_u32 s44, s44, s45"); A("s_lshl_b32 s45, s41, 1"); A("s_add_u32 s44, s44, s45")
    A("s_lshl_b32 s44, s44, 10"); A(f"s_add_u32 s44, s44, {WS_X1:#x}")
    A("v_lshlrev_b32 v22, 4, v2")
    A("buffer_store_dwordx4 v[24:27], v22, s[28:31], s44 offen")
    A("buffer_store_dwordx4 v[28:31], v22, s[28:31], s44 offen offset:1024")
    A("s_lshl_b32 s44, s42, 7"); A("s_lshl_b32 s45, s27, 1"); A("s_add_u32 s45, s45, s41"); A("s_lshl_b32 s45, s45, 3"); A("s_add_u32 s44, s44, s45"); A(f"s_add_u32 s44, s44, {WS_ST1:#x}")
    A("v_lshlrev_b32 v23, 7, v12")
    A("s_mov_b32 exec_hi, 0")
    A("buffer_store_dwordx2 v[18:19], v23, s[28:31], s44 offen")
    A("s_endpgm")
    A.label(f"{N}_attn")
    A("s_sub_u32 s25, s2, 256"); A("s_and_b32 s24, s25, 7"); A("s_lshr_b32 s25, s25, 3")
    A("s_and_b32 s26, s25, 1"); A("s_lshl_b32 s27, s24, 1"); A("s_add_u32 s26, s26, s27")
    A("s_lshr_b32 s27, s25, 1")
    A("s_lshl_b32 s34, s26, 2"); A("s_add_u32 s35, s34, s33")
    A("s_waitcnt lgkmcnt(0)")
    A("s_lshl_b32 s36, s27, 16")
    A("s_add_u32 s8, s22, s36"); A("s_addc_u32 s9, s23, 0"); A(f"s_add_u32 s8, s8, {WS_K:#x}"); A("s_addc_u32 s9, s9, 0"); A("s_mov_b32 s10, 0x10000"); A("s_mov_b32 s11, 0x20000")
    A("s_add_u32 s12, s22, s36"); A("s_addc_u32 s13, s23, 0"); A(f"s_add_u32 s12, s12, {WS_V:#x}"); A("s_addc_u32 s13, s13, 0"); A("s_mov_b32 s14, 0x10000"); A("s_mov_b32 s15, 0x20000")
    srd(A, 28, 22, WS_SIZE)
    A("v_lshlrev_b32 v3, 4, v2")
    A("s_mul_i32 s37, s33, 3"); A("s_add_u32 s38, s34, s37"); A("s_sub_u32 s38, s38, 8"); A("s_lshl_b32 s38, s38, 10")
    A("s_lshl_b32 s37, s37, 10")
    A("s_mov_b32 s39, 0")
    for j in range(3):
        A(f"s_add_u32 s40, s38, {j*1024}")
        A("v_add_u32 v4, s40, v3")
        A(f"s_add_u32 m0, s37, {j*1024}"); A("s_nop 0")
        A(f"buffer_load_dwordx4 v4, s[8:11], s39 offen lds")
        A(f"s_add_u32 m0, s37, {j*1024 + 12288}"); A("s_nop 0")
        A(f"buffer_load_dwordx4 v4, s[12:15], s39 offen lds")
    VQ = 8
    A("s_lshl_b32 s40, s35, 10"); A("s_add_u32 s40, s40, s36"); A(f"s_add_u32 s40, s40, {WS_Q:#x}")
    A(f"buffer_load_dwordx4 {v(VQ,4)}, v3, s[28:31], s40 offen")
    A("v_mov_b32 v5, 0x3f803f80"); A("v_lshlrev_b32 v6, 2, v0"); A("ds_write_b32 v6, v5 offset:24576")
    VKA, VVA, VST = 6, 7, 12
    A("v_lshrrev_b32 v13, 5, v2"); A("v_lshlrev_b32 v14, 7, v13")
    A("v_bfe_u32 v15, v2, 1, 1"); A("v_lshl_add_u32 v14, v15, 6, v14")
    A("v_bfe_u32 v15, v2, 2, 2"); A("v_lshl_add_u32 v14, v15, 4, v14")
    A("v_and_b32 v15, 1, v2"); A("v_lshl_add_u32 v14, v15, 3, v14")
    A("v_add_u32 v14, 12288, v14")
    A("v_lshlrev_b32 v13, 7, v13"); A("v_xor_b32 v13, 128, v13"); A("v_add_u32 v13, 24576, v13")
    A("v_bfe_u32 v15, v2, 4, 1"); A("v_cmp_eq_u32 s[44:45], 0, v15")
    A("v_mov_b32 v15, 1024")
    A(f"v_cndmask_b32 {v(VST)}, 0, v15, s[44:45]")
    A("s_sub_u32 s46, 8, s34"); A("s_cmp_ge_u32 s26, 2"); A("s_cselect_b32 s46, s33, s46"); A("s_lshl_b32 s46, s46, 10")
    A("v_add_u32 v14, s46, v14")
    A(f"v_cndmask_b32 {v(VVA)}, v13, v14, s[44:45]")
    A(f"v_add_u32 {v(VKA)}, s46, v3")
    KF = [16, 20]; SB = [32, 48]; M0, M8, NM, PP, VF, O, MX = 64, 80, 96, 112, [120, 128], 136, 24
    A("v_and_b32 v13, 31, v2"); A("v_lshrrev_b32 v14, 5, v2"); A("v_lshlrev_b32 v14, 2, v14"); A("v_sub_u32 v13, v13, v14")
    for r in range(16):
        A(f"v_cmp_gt_i32 s[{48+2*r}:{49+2*r}], {8*(r//4) + r%4}, v13")
    A(f"v_mov_b32 v14, {hexf(NEGBIG)}")
    for r in range(16):
        A(f"v_cndmask_b32 {v(M0+r)}, v14, 0, s[{48+2*r}:{49+2*r}]")
        A(f"v_cndmask_b32 {v(M8+r)}, 0, v14, s[{48+2*r}:{49+2*r}]")
    A("s_waitcnt vmcnt(0) lgkmcnt(0)")
    A("s_barrier")
    def ninstr(i0): return sum(1 for x in A.L[i0:] if x.startswith("    ") and not x.strip().startswith(";"))
    def pad(i0, need):
        n = ninstr(i0)
        if n < need: A(f"s_nop {need - n - 1}")
    def rdK(f, off): A(f"ds_read_b128 {v(f,4)}, {v(VKA)} offset:{off}")
    def rdV(f):
        for u in range(2):
            for e2 in range(2):
                A(f"ds_read_b64_tr_b16 {v(f+4*u+2*e2,2)}, {v(VVA)} offset:{(4*u+2*e2)*128}")
    def qk(S, kf, C):
        A(f"v_mfma_f32_32x32x16_bf16 {v(S,16)}, {v(kf,4)}, {v(VQ,4)}, {C}")
        return len(A.L)
    def maxred(S, first):
        for i in range(8):
            if first and i == 0: A(f"v_max_f32 {v(MX)}, {v(S)}, {v(S+1)}")
            else: A(f"v_max3_f32 {v(MX)}, {v(S+2*i)}, {v(S+2*i+1)}, {v(MX)}")
    def finish_max():
        A(f"v_mov_b32 v25, {v(MX)}"); A("s_nop 1")
        A(f"v_permlane32_swap_b32 {v(MX)}, v25"); A("s_nop 1")
        A(f"v_max_f32 {v(MX)}, {v(MX)}, v25")
        A(f"v_sub_f32 {v(NM)}, 0, {v(MX)}")
        for r in range(1, 16): A(f"v_mov_b32 {v(NM+r)}, {v(NM)}")
    def expcvt(S):
        for i in range(0, 16, 4):
            for k in range(4): A(f"v_exp_f32 {v(S+i+k)}, {v(S+i+k)}")
            if i == 12: A("s_nop 0")
            if i > 0:
                A(f"v_cvt_pk_bf16_f32 {v(PP+(i-4)//2)}, {v(S+i-4)}, {v(S+i-3)}"); A(f"v_cvt_pk_bf16_f32 {v(PP+(i-4)//2+1)}, {v(S+i-2)}, {v(S+i-1)}")
        A(f"v_cvt_pk_bf16_f32 {v(PP+6)}, {v(S+12)}, {v(S+13)}"); A(f"v_cvt_pk_bf16_f32 {v(PP+7)}, {v(S+14)}, {v(S+15)}")
    def pv(vf, first):
        A("s_nop 1")
        A(f"v_mfma_f32_32x32x16_bf16 {v(O,16)}, {v(vf,4)}, {v(PP,4)}, {'0' if first else v(O,16)}")
        A(f"v_mfma_f32_32x32x16_bf16 {v(O,16)}, {v(vf+4,4)}, {v(PP+4,4)}, {v(O,16)}")
        return len(A.L)
    A("s_cmp_lt_u32 s26, 2"); A(f"s_cbranch_scc1 {N}_slow")
    Cof = lambda j, a, b, c: (v(a,16) if j == 0 else v(c,16) if j == 8 else b)
    rdK(KF[0], 0); rdK(KF[1], 1024)
    A("s_waitcnt lgkmcnt(1)")
    mk = [None]*9
    mk[0] = qk(SB[0], KF[0], Cof(0, M0, "0", M8))
    for j in range(9):
        if j + 1 <= 8:
            A("s_waitcnt lgkmcnt(0)")
            mk[j+1] = qk(SB[(j+1)%2], KF[(j+1)%2], Cof(j+1, M0, "0", M8))
            if j + 2 <= 8: rdK(KF[j%2], (j+2)*1024)
        pad(mk[j], 12)
        maxred(SB[j%2], j == 0)
    finish_max()
    for r in range(16):
        A(f"v_sub_f32 {v(M0+r)}, {v(M0+r)}, {v(MX)}"); A(f"v_sub_f32 {v(M8+r)}, {v(M8+r)}, {v(MX)}")
    rdK(KF[0], 0); rdK(KF[1], 1024); rdV(VF[0])
    A("s_waitcnt lgkmcnt(5)")
    mk[0] = qk(SB[0], KF[0], Cof(0, M0, v(NM,16), M8))
    for j in range(9):
        if j + 1 <= 8:
            A("s_waitcnt lgkmcnt(4)")
            mk[j+1] = qk(SB[(j+1)%2], KF[(j+1)%2], Cof(j+1, M0, v(NM,16), M8))
            if j + 2 <= 8: rdK(KF[j%2], (j+2)*1024)
            A(f"v_add_u32 {v(VVA)}, {v(VVA)}, {v(VST)}")
            rdV(VF[(j+1)%2])
        pad(mk[j], 12)
        expcvt(SB[j%2])
        newer = (1 if j + 2 <= 8 else 0) + (4 if j + 1 <= 8 else 0)
        A(f"s_waitcnt lgkmcnt({newer})")
        last = pv(VF[j%2], j == 0)
    A(f"s_branch {N}_fin")
    A.label(f"{N}_slow")
    A(f"v_mov_b32 {v(MX)}, v14")
    A(f"v_mov_b32 v26, {v(VKA)}")
    A("s_mov_b32 s47, s35")
    lp, ex = A.uid(N), A.uid(N)
    A.label(lp)
    A("s_cmp_eq_u32 s47, 0"); A(f"s_cbranch_scc1 {ex}")
    A(f"ds_read_b128 {v(KF[0],4)}, v26"); A("s_waitcnt lgkmcnt(0)")
    qk(SB[0], KF[0], "0"); A("s_nop 15")
    maxred(SB[0], False)
    A("v_add_u32 v26, 1024, v26"); A("s_sub_u32 s47, s47, 1"); A(f"s_branch {lp}")
    A.label(ex)
    A(f"ds_read_b128 {v(KF[0],4)}, v26"); A("s_waitcnt lgkmcnt(0)")
    qk(SB[0], KF[0], v(M8,16)); A("s_nop 15")
    maxred(SB[0], False)
    finish_max()
    for r in range(16): A(f"v_sub_f32 {v(M8+r)}, {v(M8+r)}, {v(MX)}")
    for r in range(16): A(f"v_mov_b32 {v(O+r)}, 0")
    A("s_mov_b32 s47, s35")
    lp, ex = A.uid(N), A.uid(N)
    def slow_blk(C):
        A(f"ds_read_b128 {v(KF[0],4)}, {v(VKA)}"); rdV(VF[0]); A("s_waitcnt lgkmcnt(0)")
        qk(SB[0], KF[0], C); A("s_nop 15")
        expcvt(SB[0])
        pv(VF[0], False)
    A.label(lp)
    A("s_cmp_eq_u32 s47, 0"); A(f"s_cbranch_scc1 {ex}")
    slow_blk(v(NM,16))
    A(f"v_add_u32 {v(VKA)}, 1024, {v(VKA)}"); A(f"v_add_u32 {v(VVA)}, {v(VVA)}, {v(VST)}")
    A("s_sub_u32 s47, s47, 1"); A(f"s_branch {lp}")
    A.label(ex)
    slow_blk(v(M8,16))
    A.label(f"{N}_fin")
    A("s_nop 15")
    A(f"v_rcp_f32 v25, {v(O+8)}"); A("s_nop 0")
    for r in range(8): A(f"v_mul_f32 {v(O+r)}, {v(O+r)}, v25")
    for j in range(4): A(f"v_cvt_pk_bf16_f32 {v(28+j)}, {v(O+2*j)}, {v(O+2*j+1)}")
    A("s_lshl_b32 s40, s35, 5"); A("s_add_u32 s40, s40, s27"); A("s_lshl_b32 s40, s40, 10"); A(f"s_add_u32 s40, s40, {WS_O:#x}")
    A("buffer_store_dwordx4 v[28:31], v3, s[28:31], s40 offen")
    A.label(f"{N}_done")
    A("s_endpgm")
    return A.text(), 160, LDS_B
```

```python
from common import *
from gemm_core import *

LDS_C = 131072 + 2048
def gen_C():
    A = Asm()
    N = "kC"
    A("s_cmp_ge_u32 s2, 256"); A(f"s_cbranch_scc1 {N}_done")
    A("s_and_b32 s24, s2, 7"); A("s_lshr_b32 s25, s2, 3")
    A("s_cmp_ge_u32 s25, 28"); A(f"s_cbranch_scc1 {N}_done")
    A("s_load_dwordx2 s[18:19], s[0:1], 48")
    A("s_load_dwordx2 s[22:23], s[0:1], 80")
    A("s_cmp_ge_u32 s25, 14"); A("s_cselect_b32 s26, 1, 0"); A("s_cselect_b32 s27, 14, 0"); A("s_sub_u32 s27, s25, s27")
    A("s_lshl_b32 s28, s24, 1"); A("s_add_u32 s26, s26, s28")
    A("v_lshrrev_b32 v1, 6, v0"); A("v_and_b32 v2, 63, v0"); A("v_readfirstlane_b32 s33, v1")
    A("s_cmp_ge_u32 s25, 14"); A("s_cselect_b32 s37, 4, 0"); A("s_add_u32 s37, s37, s27"); A("s_add_u32 s37, s37, s24"); A("s_and_b32 s37, s37, 7")
    A("s_movk_i32 s34, 3584"); A("s_lshl_b32 s35, s27, 8")
    A("s_waitcnt lgkmcnt(0)")
    srd(A, 12, 18, 0x1C0000); srd(A, 28, 22, WS_SIZE)
    A("s_cmp_ge_u32 s33, 4"); A(f"s_cbranch_scc1 {N}_loader")
    A.stamp(0)
    A("s_lshr_b32 s38, s33, 1"); A("s_and_b32 s39, s33, 1")
    compute_setup(A, 'frag', "s38", "s39", 8, 12, 4)
    compute_loop(A, 'frag', 64, 8, 12, 16, 32)
    A("v_and_b32 v4, 31, v2"); A("v_lshlrev_b32 v4, 3, v4"); A("s_lshl_b32 s46, s38, 9"); A("s_add_u32 s46, s46, 131072"); A("v_add_u32 v4, s46, v4")
    A("ds_read_b64 v[52:53], v4"); A("ds_read_b64 v[54:55], v4 offset:256")
    A("v_lshrrev_b32 v51, 5, v2"); A("v_lshlrev_b32 v51, 4, v51"); A("s_lshl_b32 s46, s39, 8"); A("s_add_u32 s46, s46, 132096"); A("v_add_u32 v51, s46, v51")
    for cb in range(2):
        for g in range(4):
            A(f"ds_read_b128 {v(16+16*cb+4*g,4)}, v51 offset:{cb*128+g*32}")
    A("s_waitcnt lgkmcnt(0)")
    for b in range(2):
        for cb in range(2):
            for j in range(8):
                A(f"v_pk_mul_f32 {v(56+2*(j%4),2)}, {v(16+16*cb+2*j,2)}, {v(52+2*b,2)} op_sel:[0,1] op_sel_hi:[1,1]")
                a = 64 + 16*(2*b+cb) + 2*j
                A(f"v_pk_fma_f32 {v(a,2)}, {v(a,2)}, {v(52+2*b,2)}, {v(56+2*(j%4),2)} op_sel_hi:[1,0,1]")
    A.stamp(6)
    A(f"v_mov_b32 v4, {hexf(GK2)}"); A(f"v_mov_b32 v5, {hexf(GK1)}"); A("v_mov_b32 v6, 1.0"); A("v_mov_b32 v7, 1.0")
    A("v_lshlrev_b32 v14, 4, v2")
    A("s_lshl_b32 s46, s26, 2"); A("s_lshl_b32 s47, s38, 1"); A("s_add_u32 s46, s46, s47"); A("s_mul_i32 s46, s46, 112")
    A("s_lshl_b32 s47, s27, 3"); A("s_add_u32 s46, s46, s47"); A("s_lshl_b32 s47, s39, 2"); A("s_add_u32 s46, s46, s47")
    A("s_lshl_b32 s46, s46, 10"); A(f"s_add_u32 s46, s46, {WS_U:#x}")
    for b in range(2):
        for cb in range(2):
            a = 64 + 16*(2*b+cb)
            for half in range(2):
                gelu_regs(A, [a+8*half+2*j for j in range(4)], 16, 4, 6)
                d = 128 + 8*((2*b+cb) % 2) + 4*half
                for j in range(4):
                    A(f"v_cvt_pk_bf16_f32 {v(d+j)}, {v(a+8*half+2*j)}, {v(a+8*half+2*j+1)}")
                A(f"s_add_u32 s47, s46, {(b*112 + 2*cb+half)*1024}")
                A(f"buffer_store_dwordx4 {v(d,4)}, v14, s[28:31], s47 offen")
    A("s_endpgm")
    A.label(f"{N}_loader")
    A("s_sub_u32 s38, s33, 4")
    loader_setup(A, 'frag', 8, 9, 10, 4, "s34")
    A("s_lshl_b32 s40, s26, 2"); A("s_add_u32 s40, s40, s38"); A("s_lshl_b32 s40, s40, 15"); A(f"s_add_u32 s40, s40, {WS_X1:#x}")
    A("s_lshl_b32 s41, s38, 4"); A("s_mul_i32 s41, s41, s34"); A("s_add_u32 s41, s41, s35")
    A("s_lshl_b32 s42, s34, 2"); A("s_lshl_b32 s43, s34, 6")
    A("s_lshl_b32 s44, s38, 12"); A("s_lshl_b32 s45, s38, 12")
    NS = 4 + 4
    def stats_issue():
        A("v_and_b32 v12, 31, v2"); A("v_lshrrev_b32 v13, 5, v2"); A("v_lshlrev_b32 v14, 7, v12"); A("v_lshl_add_u32 v14, v13, 6, v14")
        A("s_lshl_b32 s50, s26, 7"); A("s_lshl_b32 s51, s38, 5"); A("s_add_u32 s50, s50, s51"); A("s_lshl_b32 s50, s50, 7"); A(f"s_add_u32 s50, s50, {WS_ST1:#x}")
        for j in range(4): A(f"buffer_load_dwordx4 {v(16+4*j,4)}, v14, s[28:31], s50 offen offset:{16*j}")
        A("v_lshlrev_b32 v15, 2, v12"); A("v_lshl_add_u32 v15, v13, 12, v15")
        A("s_lshl_b32 s50, s27, 13"); A("s_lshl_b32 s51, s38, 7"); A("s_add_u32 s50, s50, s51"); A(f"s_add_u32 s50, s50, {WS_CS3:#x}")
        for j in range(8): A(f"buffer_load_dword {v(32+j)}, v15, s[28:31], s50 offen offset:{512*j}")
    NS = 12
    def stats_finish():
        A("s_waitcnt vmcnt(0)")
        A("v_pk_add_f32 v[16:17], v[16:17], v[18:19]"); A("v_pk_add_f32 v[20:21], v[20:21], v[22:23]")
        A("v_pk_add_f32 v[24:25], v[24:25], v[26:27]"); A("v_pk_add_f32 v[28:29], v[28:29], v[30:31]")
        A("v_pk_add_f32 v[16:17], v[16:17], v[20:21]"); A("v_pk_add_f32 v[24:25], v[24:25], v[28:29]")
        A("v_pk_add_f32 v[16:17], v[16:17], v[24:25]")
        for j in range(1, 8, 2): A(f"v_add_f32 {v(32+j-1)}, {v(32+j-1)}, {v(32+j)}")
        A("v_add_f32 v32, v32, v34"); A("v_add_f32 v36, v36, v38"); A("v_add_f32 v32, v32, v36")
        A("v_mov_b32 v18, v16"); A("v_mov_b32 v19, v17"); A("v_mov_b32 v33, v32"); A("s_nop 1")
        A("v_permlane32_swap_b32 v16, v18"); A("v_permlane32_swap_b32 v17, v19"); A("v_permlane32_swap_b32 v32, v33"); A("s_nop 1")
        A("v_add_f32 v16, v16, v18"); A("v_add_f32 v17, v17, v19"); A("v_add_f32 v32, v32, v33")
        A(f"v_mul_f32 v16, {hexf(1/512)}, v16"); A(f"v_mul_f32 v17, {hexf(1/512)}, v17")
        A("v_fma_f32 v17, -v16, v16, v17"); A("v_max_f32 v17, 0, v17"); A(f"v_add_f32 v17, {hexf(EPS)}, v17")
        A("v_rsq_f32 v20, v17"); A("s_nop 0")
        A("v_mul_f32_e64 v21, -v16, v20")
        A("v_lshlrev_b32 v22, 3, v12"); A("s_lshl_b32 s50, s38, 8"); A("s_add_u32 s50, s50, 131072"); A("v_add_u32 v22, s50, v22")
        A("v_lshlrev_b32 v23, 2, v12"); A("s_lshl_b32 s50, s38, 7"); A("s_add_u32 s50, s50, 132096"); A("v_add_u32 v23, s50, v23")
        A("s_mov_b32 exec_hi, 0")
        A("ds_write_b64 v22, v[20:21]"); A("ds_write_b32 v23, v32")
        A("s_mov_b32 exec_hi, -1")
        A("s_waitcnt lgkmcnt(0)")
    loader_loop_c(A, "s[28:31]", "s[12:15]", 8, 9, 10, "s40", "s41", "4096", "s43", "s42", "s44", "s45", "s46", "s37", "s47", "s48", NS, stats_issue, stats_finish)
    A.label(f"{N}_done")
    A("s_endpgm")
    return A.text(), 144, LDS_C

def loader_loop_c(A, srdX, srdW, vXe, vXo, vW, sXbase, sWbase, sXadv, sWadv, sWstep, sLdsX, sLdsW, stmp, sRot, sXoff, sWoff, NS, stats_issue, stats_finish, nchunk=8):
    xmode = 'frag'
    def issue(ch):
        A(f"s_mul_i32 {sXoff}, {sRot}, {sXadv}"); A(f"s_add_u32 {sXoff}, {sXoff}, {sXbase}")
        A(f"s_mul_i32 {sWoff}, {sRot}, {sWadv}"); A(f"s_add_u32 {sWoff}, {sWoff}, {sWbase}")
        loader_issue_chunk(A, xmode, ch % 4, srdX, srdW, vXe, vXo, vW, sXoff, sWoff, sWstep, sLdsX, sLdsW, stmp)
        if ch + 1 < nchunk:
            A(f"s_add_u32 {sRot}, {sRot}, 1"); A(f"s_and_b32 {sRot}, {sRot}, {nchunk-1}")
    issue(0); issue(1)
    A("s_waitcnt vmcnt(8)")
    A("s_barrier")
    issue(2); issue(3)
    issued = 4
    ns = 0
    for ch in range(nchunk):
        if ch + 1 < nchunk:
            out = issued - (ch + 2)
            A(f"s_waitcnt vmcnt({8*out + ns})")
        else:
            stats_finish()
        A("s_barrier")
        if issued < nchunk:
            issue(issued); issued += 1
            if issued == nchunk:
                stats_issue(); ns = NS
```

```python
from common import *
from gemm64 import *

LDS_D = 4 * 24576
def gen_D():
    A = Asm()
    N = "kD"
    A("s_cmp_ge_u32 s2, 256"); A(f"s_cbranch_scc1 {N}_done")
    A("s_load_dwordx2 s[4:5], s[0:1], 0")
    A("s_load_dwordx2 s[6:7], s[0:1], 16")
    A("s_load_dwordx2 s[16:17], s[0:1], 56")
    A("s_load_dwordx2 s[18:19], s[0:1], 64")
    A("s_load_dwordx2 s[22:23], s[0:1], 80")
    A("v_lshrrev_b32 v1, 6, v0"); A("v_and_b32 v2, 63, v0"); A("v_readfirstlane_b32 s33, v1")
    A("s_and_b32 s24, s2, 7"); A("s_lshr_b32 s25, s2, 3")
    A("s_lshr_b32 s26, s25, 3"); A("s_lshl_b32 s27, s24, 2"); A("s_add_u32 s26, s26, s27")
    A("s_and_b32 s27, s25, 7")
    A("s_mul_i32 s34, s33, 24576")
    A("s_mul_i32 s35, s33, 28")
    A("s_lshl_b32 s36, s33, 3")
    A("s_waitcnt lgkmcnt(0)")
    srd(A, 8, 4, 0x200000); srd(A, 12, 6, 0x80000); srd(A, 40, 16, 0x1C0000); srd(A, 44, 18, 0x200000); srd(A, 28, 22, WS_SIZE)
    ACH, ACS, VX, VWF, VT = 128, 192, 16, 96, 4
    XR, X1R = 112, 120
    def pre():
        A("s_lshr_b32 s60, s33, 1"); A("s_and_b32 s61, s33, 1")
        A("s_lshl_b32 s62, s26, 6"); A("s_lshl_b32 s63, s60, 5"); A("s_add_u32 s62, s62, s63")
        A("s_lshl_b32 s63, s27, 6"); A("s_lshl_b32 s64, s61, 5"); A("s_add_u32 s63, s63, s64")
        A("v_and_b32 v12, 31, v2"); A("v_lshrrev_b32 v13, 5, v2")
        A("v_lshlrev_b32 v14, 10, v12"); A("v_lshl_add_u32 v14, v13, 3, v14")
        A("s_lshl_b32 s64, s62, 10"); A("s_lshl_b32 s65, s63, 1"); A("s_add_u32 s64, s64, s65")
        for g in range(4):
            A(f"buffer_load_dwordx2 {v(XR+2*g,2)}, v14, s[8:11], s64 offen offset:{g*16}")
        A("s_lshl_b32 s66, s26, 1"); A("s_add_u32 s66, s66, s60"); A("s_lshl_b32 s66, s66, 5")
        A("s_lshl_b32 s65, s27, 2"); A("s_add_u32 s66, s66, s65"); A("s_lshl_b32 s65, s61, 1"); A("s_add_u32 s66, s66, s65")
        A("s_lshl_b32 s66, s66, 10"); A(f"s_add_u32 s66, s66, {WS_X1:#x}")
        A(f"buffer_load_dwordx4 {v(X1R,4)}, v4, s[28:31], s66 offen")
        A(f"buffer_load_dwordx4 {v(X1R+4,4)}, v4, s[28:31], s66 offen offset:1024")
        return 6
    segs = [Seg(WS_O, 32, "s36", 8, "s[12:15]", 1024, 'nat', ACS), Seg(WS_U, 112, "s35", 28, "s[40:43]", 1024, 'perm', ACH)]
    gemm64(A, segs, 10, "s[28:31]", "s26", "s27", "s33", "s34", 2, VX, VWF, VT, 50, pre_hook=pre)
    A("s_nop 15")
    reduce_scatter(A, [ACH, ACS], "s33", "s34", 24576, 2, VT)
    A("s_waitcnt vmcnt(0)")
    A(f"v_mov_b32 v16, {hexf(-LOG2E)}"); A(f"v_mov_b32 v17, {hexf(-LOG2E)}"); A("v_mov_b32 v18, 1.0"); A("v_mov_b32 v19, 1.0")
    for j in range(8):
        A(f"v_lshlrev_b32 v20, 16, {v(X1R+j)}"); A(f"v_and_b32 v21, 0xffff0000, {v(X1R+j)}")
        A(f"v_pk_add_f32 {v(ACH+2*j,2)}, {v(ACH+2*j,2)}, v[20:21]")
    for j in range(8): A(f"v_pk_mul_f32 {v(32+2*j,2)}, {v(ACH+2*j,2)}, v[16:17]")
    for j in range(16): A(f"v_exp_f32 {v(32+j)}, {v(32+j)}")
    A("s_nop 0")
    for j in range(8): A(f"v_pk_add_f32 {v(32+2*j,2)}, {v(32+2*j,2)}, v[18:19]")
    for j in range(16): A(f"v_rcp_f32 {v(32+j)}, {v(32+j)}")
    A("s_nop 0")
    for j in range(8): A(f"v_pk_mul_f32 {v(ACH+2*j,2)}, {v(ACH+2*j,2)}, {v(32+2*j,2)}")
    for j in range(8):
        A(f"v_lshlrev_b32 v20, 16, {v(XR+j)}"); A(f"v_and_b32 v21, 0xffff0000, {v(XR+j)}")
        A(f"v_pk_fma_f32 {v(ACH+2*j,2)}, {v(ACH+2*j,2)}, {v(ACS+2*j,2)}, v[20:21]")
    for j in range(8): A(f"v_cvt_pk_bf16_f32 {v(48+j)}, {v(ACH+2*j)}, {v(ACH+2*j+1)}")
    for g in range(4):
        A(f"buffer_store_dwordx2 {v(48+2*g,2)}, v14, s[44:47], s64 offen offset:{g*16}")
    A.label(f"{N}_done")
    A("s_endpgm")
    return A.text(), 256, LDS_D
```

```python
import gen
from common import *
K = gen.all_kernels("ABCD")
empty = ("kE", 256, 64, "    s_endpgm\n", 8, 0)
for n in (4, 8):
    open(f"var_e{n}.s", "w").write(gen.build(K + [empty] * n))
open(f"var_pre4.s", "w").write(gen.build([empty] * 4 + K))
```

```python
from common import *

class Seg:
    def __init__(self, xbase, nks, ks0, nsteps, wsrd, wstride, order, acc):
        self.xbase, self.nks, self.ks0, self.nsteps, self.wsrd, self.wstride, self.order, self.acc = xbase, nks, ks0, nsteps, wsrd, wstride, order, acc

def gemm64(A, segs, P, srdWS, sRT, sCT, sWave, sLds, vLane, vX, vWf, vT, sT, pre_hook=None):
    vL16, vWg, vWaN, vWaP = vT, vT+1, vT+2, vT+4
    t0, t1 = vT+6, vT+7
    l = vLane
    A(f"v_lshlrev_b32 {v(vL16)}, 4, {v(l)}")
    A(f"v_bfe_u32 {v(t0)}, {v(l)}, 4, 1"); A(f"v_lshlrev_b32 {v(t0)}, 2, {v(t0)}")
    A(f"v_and_b32 {v(t1)}, 7, {v(l)}"); A(f"v_xor_b32 {v(t0)}, {v(t0)}, {v(t1)}"); A(f"v_lshlrev_b32 {v(t0)}, 4, {v(t0)}")
    A(f"v_lshrrev_b32 {v(t1)}, 3, {v(l)}"); A(f"v_lshl_add_u32 {v(vWg)}, {v(t1)}, 10, {v(t0)}")
    orders = set(s_.order for s_ in segs)
    A(f"v_bfe_u32 {v(t0)}, {v(l)}, 4, 1"); A(f"v_lshlrev_b32 {v(t0)}, 1, {v(t0)}")
    A(f"v_bfe_u32 {v(t1)}, {v(l)}, 1, 1"); A(f"v_add_u32 {v(t0)}, {v(t0)}, {v(t1)}")
    A(f"v_bfe_u32 {v(t1)}, {v(l)}, 3, 1"); A(f"v_lshlrev_b32 {v(t1)}, 2, {v(t1)}")
    A(f"v_xor_b32 {v(t0)}, {v(t0)}, {v(t1)}")
    A(f"v_lshlrev_b32 {v(t0)}, 4, {v(t0)}")
    A(f"v_and_b32 {v(t1)}, 1, {v(l)}"); A(f"v_lshl_add_u32 {v(t0)}, {v(t1)}, 3, {v(t0)}")
    A(f"v_add_u32 {v(t0)}, {sLds}, {v(t0)}")
    for (o, reg, sh) in (('nat', vWaN, 3), ('perm', vWaP, 2)):
        if o not in orders: continue
        A(f"v_lshrrev_b32 {v(t1)}, 5, {v(l)}"); A(f"v_lshlrev_b32 {v(t1)}, {sh}, {v(t1)}")
        A(f"v_bfe_u32 {v(reg+1)}, {v(l)}, 2, 2"); A(f"v_add_u32 {v(t1)}, {v(t1)}, {v(reg+1)}")
        A(f"v_lshl_add_u32 {v(reg)}, {v(t1)}, 7, {v(t0)}")
        A(f"v_xor_b32 {v(reg+1)}, 64, {v(reg)}")
    steps = []
    for si, sg in enumerate(segs):
        for j in range(sg.nsteps): steps.append((si, j))
    T = len(steps)
    sX0, sX1, sW, sTmp = f"s{sT}", f"s{sT+1}", f"s{sT+2}", f"s{sT+3}"
    cur_seg = [-1]
    def seg_init(si):
        sg = segs[si]
        A(f"s_lshl_b32 {sX0}, {sRT}, 1"); A(f"s_mul_i32 {sX0}, {sX0}, {sg.nks}"); A(f"s_add_u32 {sX0}, {sX0}, {sg.ks0}")
        A(f"s_lshl_b32 {sX0}, {sX0}, 10"); A(f"s_add_u32 {sX0}, {sX0}, {sg.xbase:#x}")
        A(f"s_add_u32 {sX1}, {sX0}, {sg.nks*1024:#x}")
        A(f"s_lshl_b32 {sW}, {sg.ks0}, 14"); A(f"s_lshl_b32 {sTmp}, {sCT}, 7"); A(f"s_add_u32 {sW}, {sW}, {sTmp}")
    def issue(t):
        si, j = steps[t]
        sg = segs[si]
        if si != cur_seg[0]:
            seg_init(si); cur_seg[0] = si
        slot = t % P
        xo = (j % 4) * 1024
        A(f"buffer_load_dwordx4 {v(vX+8*slot,4)}, {v(vL16)}, {srdWS}, {sX0} offen offset:{xo}")
        A(f"buffer_load_dwordx4 {v(vX+8*slot+4,4)}, {v(vL16)}, {srdWS}, {sX1} offen offset:{xo}")
        if j % 4 == 3:
            A(f"s_add_u32 {sX0}, {sX0}, 4096"); A(f"s_add_u32 {sX1}, {sX1}, 4096")
        A(f"s_add_u32 m0, {sLds}, {slot*2048}")
        A(f"s_add_u32 {sTmp}, {sW}, 8192")
        A(f"buffer_load_dwordx4 {v(vWg)}, {sg.wsrd}, {sW} offen lds")
        A(f"s_add_u32 m0, m0, 1024")
        A(f"s_add_u32 {sW}, {sW}, 16384")
        A(f"buffer_load_dwordx4 {v(vWg)}, {sg.wsrd}, {sTmp} offen lds")
    def reads(t, f):
        si, j = steps[t]; sg = segs[si]
        reg = vWaN if sg.order == 'nat' else vWaP
        es = 4 if sg.order == 'nat' else 8
        slot = t % P
        return [f"ds_read_b64_tr_b16 {v(f+4*cb+2*e2,2)}, {v(reg+cb)} offset:{slot*2048 + es*e2*128}" for cb in range(2) for e2 in range(2)]
    first = set()
    def mf(t, f):
        si, j = steps[t]; sg = segs[si]
        slot = t % P
        L = []
        for (b, cb) in ((0,0),(1,0),(0,1),(1,1)):
            d = v(sg.acc + 16*(2*b+cb), 16)
            c = d if (sg.acc in first) else "0"
            L.append(f"v_mfma_f32_32x32x16_bf16 {d}, {v(f+4*cb,4)}, {v(vX+8*slot+4*b,4)}, {c}")
        first.add(sg.acc)
        return L
    issued = 0
    A.stamp(0)
    for t in range(min(P, T)):
        issue(t); issued += 1
    A.stamp(1)
    extra = 0
    if pre_hook: extra = pre_hook()
    F = [vWf, vWf + 8]
    A(f"s_waitcnt vmcnt({min(63, 4*(issued-1) + extra)})")
    A.stamp(2)
    for r in reads(0, F[0]): A(r)
    for t in range(T):
        if t == T // 2: A.stamp(3)
        cur, nxt = F[t % 2], F[(t+1) % 2]
        M = mf(t, cur)
        if t + 1 < T:
            allowed = 4 * (issued - (t + 2)) + (extra if issued <= min(P, T) else 0)
            n_after = 4 * (issued - (t + 2))
            if t + 1 < min(P, T): n_after += extra
            A(f"s_waitcnt vmcnt({min(63, n_after)}) lgkmcnt(0)")
            R = reads(t + 1, nxt)
            A(M[0]); A(R[0]); A(R[1]); A(M[1]); A(R[2]); A(R[3]); A(M[2]); A(M[3])
        else:
            A("s_waitcnt lgkmcnt(0)")
            for m in M: A(m)
        if issued < T:
            issue(issued); issued += 1

def reduce_scatter(A, accs, sWave, sLds, region, vLane, vT, nbar_label=None):
    l16 = vT
    A.stamp(4)
    A(f"v_lshlrev_b32 {v(l16)}, 4, {v(vLane)}")
    A(f"v_add_u32 {v(vT+1)}, {sLds}, {v(l16)}")
    end = A.uid("rs_end")
    labels = [A.uid("rs_w") for _ in range(4)]
    for w in range(1, 4):
        A(f"s_cmp_eq_u32 {sWave}, {w}"); A(f"s_cbranch_scc1 {labels[w]}")
    res = [a for a in accs]
    for w in range(4):
        if w: A.label(labels[w])
        for ai, acc in enumerate(accs):
            slot = 0
            for q in range(4):
                if q == w: continue
                for j in range(4):
                    A(f"ds_write_b128 {v(vT+1)}, {v(acc+16*q+4*j,4)} offset:{ai*12288 + slot*4096 + j*1024}")
                slot += 1
        A("s_waitcnt lgkmcnt(0)")
        A("s_barrier")
        for ai, acc in enumerate(accs):
            tmpq = [q for q in range(4) if q != w]
            k = 0
            for u in range(4):
                if u == w: continue
                slot = w if w < u else w - 1
                off = ai*12288 + slot*4096
                A(f"v_add_u32 {v(vT+2)}, {((u - w) * region) & 0xffffffff:#x}, {v(vT+1)}")
                for j in range(4):
                    A(f"ds_read_b128 {v(acc+16*tmpq[k]+4*j,4)}, {v(vT+2)} offset:{off + j*1024}")
                k += 1
            A("s_waitcnt lgkmcnt(0)")
            for j in range(0, 16, 2):
                A(f"v_pk_add_f32 {v(acc+16*tmpq[0]+j,2)}, {v(acc+16*tmpq[0]+j,2)}, {v(acc+16*tmpq[1]+j,2)}")
                A(f"v_pk_add_f32 {v(acc+16*tmpq[2]+j,2)}, {v(acc+16*tmpq[2]+j,2)}, {v(acc+16*w+j,2)}")
            for j in range(0, 16, 2):
                A(f"v_pk_add_f32 {v(acc+j,2)}, {v(acc+16*tmpq[0]+j,2)}, {v(acc+16*tmpq[2]+j,2)}")
        if w < 3: A(f"s_branch {end}")
    A.label(end)
    A.stamp(5)
    return res
```

```python
from asmlib import *

STAGE = 32768
XOFF = 0
WOFF = 16384

def loader_setup(A, xmode, vXe, vXo, vW, vtmp, wstride):
    l = vtmp; t = vtmp + 1; t2 = vtmp + 2
    A(f"v_and_b32 {v(l)}, 63, v0")
    if xmode == 'row':
        A(f"v_lshrrev_b32 {v(t)}, 3, {v(l)}")
        A(f"v_lshlrev_b32 {v(t)}, 10, {v(t)}")
        A(f"v_lshrrev_b32 {v(t2)}, 4, {v(l)}")
        A(f"v_and_b32 {v(vXe)}, 7, {v(l)}")
        A(f"v_xor_b32 {v(vXe)}, {v(vXe)}, {v(t2)}")
        A(f"v_xor_b32 {v(vXo)}, 4, {v(vXe)}")
        A(f"v_lshl_add_u32 {v(vXe)}, {v(vXe)}, 4, {v(t)}")
        A(f"v_lshl_add_u32 {v(vXo)}, {v(vXo)}, 4, {v(t)}")
    else:
        A(f"v_lshlrev_b32 {v(vXe)}, 4, {v(l)}")
    A(f"v_lshrrev_b32 {v(t2)}, 4, {v(l)}")
    A(f"v_lshlrev_b32 {v(t)}, 2, {v(t2)}")
    A(f"v_and_b32 {v(vW)}, 15, {v(l)}")
    A(f"v_xor_b32 {v(vW)}, {v(vW)}, {v(t)}")
    A(f"v_lshlrev_b32 {v(vW)}, 4, {v(vW)}")
    A(f"v_mul_lo_u32 {v(t2)}, {v(t2)}, {wstride}")
    A(f"v_add_u32 {v(vW)}, {v(vW)}, {v(t2)}")

def loader_issue_chunk(A, xmode, stage, srdX, srdW, vXe, vXo, vW, sXoff, sWoff, sWstep, sLdsX, sLdsW, stmp):
    if xmode == 'row':
        for j in range(4):
            if j == 0:
                A(f"s_add_u32 m0, {sLdsX}, {stage*STAGE + XOFF}")
                A(f"s_mov_b32 {stmp}, {sXoff}")
            else:
                A(f"s_add_u32 m0, m0, 1024")
                A(f"s_add_u32 {stmp}, {stmp}, 8192")
            A(f"buffer_load_dwordx4 {v(vXe if j % 2 == 0 else vXo)}, {srdX}, {stmp} offen lds")
    else:
        A(f"s_add_u32 m0, {sLdsX}, {stage*STAGE + XOFF}")
        A("s_nop 0")
        for j in range(4):
            A(f"buffer_load_dwordx4 {v(vXe)}, {srdX}, {sXoff} offen offset:{j*1024} lds")
    for j in range(4):
        if j == 0:
            A(f"s_add_u32 m0, {sLdsW}, {stage*STAGE + WOFF}")
            A(f"s_mov_b32 {stmp}, {sWoff}")
        else:
            A(f"s_add_u32 m0, m0, 1024")
            A(f"s_add_u32 {stmp}, {stmp}, {sWstep}")
        A(f"buffer_load_dwordx4 {v(vW)}, {srdW}, {stmp} offen lds")

def compute_setup(A, xmode, sWr, sWc, vXa, vWa, vtmp):
    l = vtmp; t = vtmp + 1; t2 = vtmp + 2; t3 = vtmp + 3
    A(f"v_and_b32 {v(l)}, 63, v0")
    if xmode == 'row':
        A(f"v_and_b32 {v(t)}, 31, {v(l)}")
        A(f"v_lshrrev_b32 {v(t2)}, 5, {v(l)}")
        A(f"v_bfe_u32 {v(t3)}, {v(l)}, 1, 3")
        A(f"v_xor_b32 {v(t2)}, {v(t2)}, {v(t3)}")
        A(f"v_lshlrev_b32 {v(t)}, 7, {v(t)}")
        A(f"s_lshl_b32 s90, {sWr}, 13")
        A(f"v_add_u32 {v(t)}, s90, {v(t)}")
        for ks in range(4):
            A(f"v_xor_b32 {v(vXa+ks)}, {2*ks}, {v(t2)}")
            A(f"v_lshl_add_u32 {v(vXa+ks)}, {v(vXa+ks)}, 4, {v(t)}")
    else:
        A(f"v_lshlrev_b32 {v(t)}, 4, {v(l)}")
        A(f"s_lshl_b32 s90, {sWr}, 13")
        A(f"v_add_u32 {v(vXa)}, s90, {v(t)}")
    A(f"v_bfe_u32 {v(t)}, {v(l)}, 2, 2")
    A(f"v_lshrrev_b32 {v(t2)}, 5, {v(l)}")
    A(f"v_lshlrev_b32 {v(t2)}, {3 if xmode == 'row' else 2}, {v(t2)}")
    A(f"v_add_u32 {v(t2)}, {v(t2)}, {v(t)}")
    A(f"v_lshlrev_b32 {v(t2)}, 8, {v(t2)}")
    A(f"v_bfe_u32 {v(t3)}, {v(l)}, 4, 1")
    A(f"v_lshlrev_b32 {v(t3)}, 1, {v(t3)}")
    A(f"v_bfe_u32 {v(vWa)}, {v(l)}, 1, 1")
    A(f"v_add_u32 {v(t3)}, {v(t3)}, {v(vWa)}")
    A(f"s_lshl_b32 s90, {sWc}, 3")
    A(f"v_add_u32 {v(t3)}, s90, {v(t3)}")
    A(f"v_lshlrev_b32 {v(t)}, 2, {v(t)}")
    A(f"v_xor_b32 {v(t3)}, {v(t3)}, {v(t)}")
    A(f"v_xor_b32 {v(t)}, 4, {v(t3)}")
    A(f"v_and_b32 {v(l)}, 1, {v(l)}")
    A(f"v_lshl_add_u32 {v(t2)}, {v(l)}, 3, {v(t2)}")
    A(f"v_add_u32 {v(t2)}, {WOFF}, {v(t2)}")
    A(f"v_lshl_add_u32 {v(vWa)}, {v(t3)}, 4, {v(t2)}")
    A(f"v_lshl_add_u32 {v(vWa+1)}, {v(t)}, 4, {v(t2)}")

def frag_reads(A, xmode, ks, stage_off, vXa, vWa, fX, fW):
    for b in range(2):
        if xmode == 'row':
            A(f"ds_read_b128 {v(fX+4*b,4)}, {v(vXa+ks)} offset:{stage_off + b*4096}")
        else:
            A(f"ds_read_b128 {v(fX+4*b,4)}, {v(vXa)} offset:{stage_off + b*4096 + ks*1024}")
    estep = 4 if xmode == 'row' else 8
    for cb in range(2):
        for e2 in range(2):
            A(f"ds_read_b64_tr_b16 {v(fW+4*cb+2*e2,2)}, {v(vWa+cb)} offset:{stage_off + (16*ks + estep*e2)*256}")

def mfmas(A, acc, fX, fW, swap=False, first=False):
    for b in range(2):
        for cb in range(2):
            d = v(acc + 16*(2*b+cb), 16)
            c = "0" if first else d
            if not swap:
                A(f"v_mfma_f32_32x32x16_bf16 {d}, {v(fW+4*cb,4)}, {v(fX+4*b,4)}, {c}")
            else:
                A(f"v_mfma_f32_32x32x16_bf16 {d}, {v(fX+4*b,4)}, {v(fW+4*cb,4)}, {c}")


def frag_read_list(xmode, ks, stage_off, vXa, vWa, fX, fW):
    L = []
    estep = 4 if xmode == 'row' else 8
    def X(b):
        if xmode == 'row':
            return f"ds_read_b128 {v(fX+4*b,4)}, {v(vXa+ks)} offset:{stage_off + b*4096}"
        return f"ds_read_b128 {v(fX+4*b,4)}, {v(vXa)} offset:{stage_off + b*4096 + ks*1024}"
    def W(cb, e2):
        return f"ds_read_b64_tr_b16 {v(fW+4*cb+2*e2,2)}, {v(vWa+cb)} offset:{stage_off + (16*ks + estep*e2)*256}"
    return [W(0,0), W(0,1), X(0), X(1), W(1,0), W(1,1)]

def mfma_list(acc, fX, fW, swap=False, first=False):
    L = []
    for (b, cb) in ((0,0),(1,0),(0,1),(1,1)):
        d = v(acc + 16*(2*b+cb), 16)
        c = "0" if first else d
        if not swap: L.append(f"v_mfma_f32_32x32x16_bf16 {d}, {v(fW+4*cb,4)}, {v(fX+4*b,4)}, {c}")
        else: L.append(f"v_mfma_f32_32x32x16_bf16 {d}, {v(fX+4*b,4)}, {v(fW+4*cb,4)}, {c}")
    return L

def compute_loop(A, xmode, acc, vXa, vWa, f0, f1, swap=False, nchunk=8, hook=None):
    nx = 4 if xmode == 'row' else 1
    cur_hi = 0
    def set_hi(hi):
        nonlocal cur_hi
        if hi != cur_hi:
            d = (hi - cur_hi) * 65536
            for i in range(nx):
                A(f"v_add_u32 {v(vXa+i)}, {d & 0xffffffff:#x}, {v(vXa+i)}")
            for i in range(2):
                A(f"v_add_u32 {v(vWa+i)}, {d & 0xffffffff:#x}, {v(vWa+i)}")
            cur_hi = hi
    F = [f0, f1]
    A.stamp(1)
    A("s_barrier")
    A.stamp(2)
    for r in frag_read_list(xmode, 0, 0, vXa, vWa, F[0], F[0]+8): A(r)
    step = 0
    for ch in range(nchunk):
        for ks in range(4):
            cur = F[step % 2]; nxt = F[(step + 1) % 2]
            last = (ch == nchunk - 1 and ks == 3)
            M = mfma_list(acc, cur, cur + 8, swap, first=(step == 0))
            A("s_waitcnt lgkmcnt(0)")
            if ks < 3:
                R = frag_read_list(xmode, ks + 1, ((ch % 4) % 2) * 32768, vXa, vWa, nxt, nxt + 8)
                A(M[0]); A(R[0]); A(R[1]); A(M[1]); A(R[2]); A(R[3]); A(M[2]); A(R[4]); A(R[5]); A(M[3])
            else:
                A(M[0])
                A("s_barrier")
                if ch == 0: A.stamp(3)
                if ch == 3: A.stamp(4)
                if ch == 7: A.stamp(5)
                if not last:
                    st = (ch + 1) % 4
                    set_hi(st // 2)
                    R = frag_read_list(xmode, 0, (st % 2) * 32768, vXa, vWa, nxt, nxt + 8)
                    A(R[0]); A(R[1]); A(M[1]); A(R[2]); A(R[3]); A(M[2]); A(R[4]); A(R[5]); A(M[3])
                else:
                    A(M[1]); A(M[2]); A(M[3])
            if hook: hook(ch, ks)
            step += 1

def loader_loop(A, xmode, srdX, srdW, vXe, vXo, vW, sXbase, sWbase, sXadv, sWadv, sWstep, sLdsX, sLdsW, stmp, sRot, sXoff, sWoff,
                nchunk=8, hook=None, hook0=None, hook1=None):
    def issue(ch):
        A(f"s_mul_i32 {sXoff}, {sRot}, {sXadv}"); A(f"s_add_u32 {sXoff}, {sXoff}, {sXbase}")
        A(f"s_mul_i32 {sWoff}, {sRot}, {sWadv}"); A(f"s_add_u32 {sWoff}, {sWoff}, {sWbase}")
        loader_issue_chunk(A, xmode, ch % 4, srdX, srdW, vXe, vXo, vW, sXoff, sWoff, sWstep, sLdsX, sLdsW, stmp)
        if ch + 1 < nchunk:
            A(f"s_add_u32 {sRot}, {sRot}, 1"); A(f"s_and_b32 {sRot}, {sRot}, {nchunk-1}")
    A.stamp(0)
    issue(0); issue(1)
    A.stamp(1)
    if hook0: hook0()
    A("s_waitcnt vmcnt(8)")
    A.stamp(2)
    A("s_barrier")
    A.stamp(3)
    if hook1: hook1()
    issue(2); issue(3)
    issued = 4
    for ch in range(nchunk):
        if ch + 1 < nchunk:
            out = issued - (ch + 2)
            A(f"s_waitcnt vmcnt({8*out})")
        if ch in (0, 3, 4, 5, 6): A.stamp({0: 4, 3: 5, 4: 6, 5: 7, 6: 8}[ch])
        A("s_barrier")
        if issued < nchunk:
            issue(issued); issued += 1
        if hook: hook(ch)
```

```python
import sys
from common import *
HEADER = """; Kernarg layout (88 bytes, ptrs only, base s[0:1]):
"""
def add_stamps(name, text, kidx):
    pre = "    s_memtime s[66:67]\n" + "".join(f"    s_mov_b64 s[{68+2*i}:{69+2*i}], 0\n" for i in range(9)) + "    s_memrealtime s[92:93]\n    s_mov_b32 s91, s2\n    v_lshrrev_b32 v1, 6, v0\n    s_nop 0\n    v_readfirstlane_b32 s87, v1\n"
    n = [0]
    post = f"""    s_waitcnt vmcnt(0)
    s_memrealtime s[94:95]
    s_load_dwordx2 s[88:89], s[0:1], 80
    s_mov_b64 exec, 1
    s_waitcnt lgkmcnt(0)
    s_lshl_b32 s91, s91, 4
    s_add_u32 s91, s91, s87
    s_lshl_b32 s91, s91, 4
    s_add_u32 s91, s91, {WS_DBG + kidx*0x40000:#x}
    v_mov_b32 v0, s91
    v_mov_b32 v2, s92
    v_mov_b32 v3, s93
    v_mov_b32 v4, s94
    v_mov_b32 v5, s95
    global_store_dwordx4 v0, v[2:5], s[88:89]
    s_lshl_b32 s91, s91, 2
    s_add_u32 s91, s91, {(WS_DBG + 0x100000*(1+kidx) - 4*(WS_DBG + kidx*0x40000)) & 0xffffffff:#x}
    v_mov_b32 v0, s91
""" + "".join(f"    s_sub_u32 s{68+2*i}, s{68+2*i}, s66\n    v_mov_b32 v2, s{68+2*i}\n    global_store_dword v0, v2, s[88:89] offset:{4*i}\n" for i in range(9)) + """    s_endpgm
"""
    return pre + text.replace("    s_endpgm\n", post)

def build(kernels, stamps=False):
    if stamps:
        kernels = [(n, g, b, add_stamps(n, t, i), vg, l) for i, (n, g, b, t, vg, l) in enumerate(kernels)]
    s = HEADER
    for (name, grid, block, text, vgpr, lds) in kernels:
        s += f"; @launch kernel={name}_kernel grid=({grid},1,1) block=({block},1,1) lds={lds}\n"
    s += '.amdgcn_target "amdgcn-amd-amdhsa--gfx950"\n.text\n'
    seen = set()
    for (name, grid, block, text, vgpr, lds) in kernels:
        if name in seen: continue
        seen.add(name)
        s += kernel_head(name + "_kernel") + text
    s += '.section .rodata,"a"\n'
    seen = set()
    for (name, grid, block, text, vgpr, lds) in kernels:
        if name in seen: continue
        seen.add(name)
        s += kernel_desc(name + "_kernel", vgpr, 96)
    return s

def all_kernels(which="ABCD", stamps=False):
    Asm.STAMP = stamps
    K = []
    if "A" in which:
        from kA import gen_A
        t, vg, lds = gen_A(); K.append(("kA", 256, 512, t, vg, lds))
    if "B" in which:
        from kB import gen_B
        t, vg, lds = gen_B(); K.append(("kB", 768, 256, t, vg, lds))
    if "C" in which:
        from kC import gen_C
        t, vg, lds = gen_C(); K.append(("kC", 256, 512, t, vg, lds))
    if "D" in which:
        from kD import gen_D
        t, vg, lds = gen_D(); K.append(("kD", 256, 320, t, vg, lds))
    return K

if __name__ == "__main__":
    which = sys.argv[1] if len(sys.argv) > 1 else "ABCD"
    out = sys.argv[2] if len(sys.argv) > 2 else "out.s"
    open(out, "w").write(build(all_kernels(which)))
    import subprocess
    r = subprocess.run(["clang", "-x", "assembler", "-target", "amdgcn-amd-amdhsa", "-mcpu=gfx950", "-c", out, "-o", "out.o"], capture_output=True, text=True)
    print(r.stderr[:3000] if r.returncode else "assembled ok")
```

```python
from common import *
from gemm_core import *

LDS_A = 131072 + 2048
def gen_A(stamp=False):
    A = Asm()
    N = "kA"
    A("s_cmp_ge_u32 s2, 256"); A(f"s_cbranch_scc1 {N}_done")
    A("s_load_dwordx4 s[4:7], s[0:1], 0")
    A("s_load_dwordx2 s[16:17], s[0:1], 32")
    A("s_load_dwordx2 s[18:19], s[0:1], 48")
    A("s_load_dwordx2 s[20:21], s[0:1], 72")
    A("s_load_dwordx2 s[22:23], s[0:1], 80")
    A("s_and_b32 s24, s2, 7"); A("s_lshr_b32 s25, s2, 3")
    A("s_lshr_b32 s26, s25, 4"); A("s_lshl_b32 s27, s24, 1"); A("s_add_u32 s26, s26, s27")
    A("s_and_b32 s27, s25, 15")
    A("v_lshrrev_b32 v1, 6, v0"); A("v_and_b32 v2, 63, v0"); A("v_readfirstlane_b32 s33, v1")
    A("s_lshr_b32 s37, s25, 4"); A("s_lshl_b32 s37, s37, 2"); A("s_add_u32 s37, s37, s27"); A("s_add_u32 s37, s37, s24"); A("s_and_b32 s37, s37, 7")
    A("s_cmp_lt_u32 s27, 12")
    A("s_movk_i32 s34, 1024"); A("s_cselect_b32 s34, 3072, s34")
    A("s_mov_b32 s14, 0x80000"); A("s_cselect_b32 s14, 0x180000, s14")
    A("s_cselect_b32 s35, 0, 12"); A("s_sub_u32 s35, s27, s35"); A("s_lshl_b32 s35, s35, 8")
    A("s_waitcnt lgkmcnt(0)")
    A("s_cmp_lt_u32 s27, 12")
    A("s_cselect_b32 s12, s6, s16"); A("s_cselect_b32 s13, s7, s17"); A("s_mov_b32 s15, 0x20000")
    srd(A, 8, 4, 0x200000)
    srd(A, 28, 22, WS_SIZE)
    A("s_cmp_ge_u32 s33, 4"); A(f"s_cbranch_scc1 {N}_loader")
    A.stamp(0)
    A("v_lshlrev_b32 v3, 2, v2")
    A("s_cmp_ge_u32 s33, 2"); A(f"s_cbranch_scc1 {N}_xstat")
    A("s_cmp_eq_u32 s33, 0")
    A("s_cselect_b32 s40, s12, s18"); A("s_cselect_b32 s41, s13, s19")
    A("s_mov_b32 s42, 0x1C0000"); A("s_cselect_b32 s42, s14, s42"); A("s_mov_b32 s43, 0x20000")
    A("s_movk_i32 s44, 3584"); A("s_cselect_b32 s44, s34, s44")
    A("s_lshl_b32 s45, s27, 8")
    A("s_cmp_eq_u32 s33, 0"); A("s_cselect_b32 s45, s35, s45")
    A(f"s_mov_b32 s46, {WS_CS3:#x}"); A(f"s_cselect_b32 s46, {WS_CSA:#x}, s46")
    A("s_lshl_b32 s47, s26, 5"); A("s_mul_i32 s47, s47, s44"); A("s_add_u32 s47, s47, s45")
    colsum_partial(A, "s[40:43]", "s47", "s44", 3, 64, None, None, None)
    A("v_mov_b32 v4, 0x3f80"); A("v_mov_b32 v5, 0x3f800000")
    A("s_lshl_b32 s47, s27, 4"); A("s_add_u32 s47, s47, s26"); A("s_lshl_b32 s47, s47, 9"); A("s_add_u32 s47, s47, s46")
    A("v_lshlrev_b32 v6, 3, v2")
    A("s_waitcnt vmcnt(0)")
    colsum_reduce(A, 64, 4, 5, 100)
    A("buffer_store_dwordx2 v[100:101], v6, s[28:31], s47 offen sc0 sc1")
    A(f"s_branch {N}_svc_done")
    A.label(f"{N}_xstat")
    A("s_lshl_b32 s47, s26, 7"); A("s_lshl_b32 s46, s27, 3"); A("s_add_u32 s47, s47, s46")
    A("s_sub_u32 s46, s33, 2"); A("s_lshl_b32 s46, s46, 2"); A("s_add_u32 s47, s47, s46")
    A("s_lshl_b32 s46, s47, 10")
    A("v_lshlrev_b32 v6, 4, v2")
    for j in range(4):
        A(f"buffer_load_dwordx4 {v(64+4*j,4)}, v6, s[8:11], s46 offen offset:{j*1024}")
    A("v_mov_b32 v4, 0x3f803f80")
    for j in range(8): A(f"v_mov_b32 {v(96+j)}, 0")
    A("s_waitcnt vmcnt(0)")
    for q in range(4):
        for j in range(4):
            A(f"v_dot2_f32_bf16 {v(96+j)}, {v(64+4*j+q)}, v4, {v(96+j)}")
            A(f"v_dot2_f32_bf16 {v(100+j)}, {v(64+4*j+q)}, {v(64+4*j+q)}, {v(100+j)}")
    A("s_nop 2")
    wave_reduce_lane63(A, list(range(96, 104)))
    A(f"v_mov_b32 v5, {hexf(EPS)}")
    for j in range(4): A(f"v_mul_f32 {v(104+4*j)}, {hexf(1/512)}, {v(96+j)}")
    for j in range(4): A(f"v_mul_f32 {v(107+4*j)}, {hexf(1/512)}, {v(100+j)}")
    for j in range(4): A(f"v_fma_f32 {v(107+4*j)}, -{v(104+4*j)}, {v(104+4*j)}, {v(107+4*j)}")
    for j in range(4): A(f"v_max_f32 {v(107+4*j)}, 0, {v(107+4*j)}")
    for j in range(4): A(f"v_add_f32 {v(105+4*j)}, v5, {v(107+4*j)}")
    for j in range(4): A(f"v_rsq_f32 {v(105+4*j)}, {v(105+4*j)}")
    for j in range(4): A(f"v_mul_f32 {v(106+4*j)}, {v(105+4*j)}, {v(105+4*j)}")
    for j in range(4): A(f"v_fma_f32 {v(106+4*j)}, {v(106+4*j)}, {v(107+4*j)}, v5")
    for j in range(4): A(f"v_rsq_f32 {v(106+4*j)}, {v(106+4*j)}")
    A("s_nop 0")
    for j in range(4): A(f"v_mul_f32 {v(106+4*j)}, {v(106+4*j)}, {v(105+4*j)}")
    A("s_lshl_b32 s46, s47, 4"); A(f"s_add_u32 s46, s46, {WS_ST:#x}")
    A("v_mov_b32 v6, 0")
    A("s_mov_b64 s[48:49], exec"); A("s_mov_b32 exec_lo, 0"); A("s_mov_b32 exec_hi, 0x80000000")
    for j in range(4):
        A(f"buffer_store_dwordx4 {v(104+4*j,4)}, v6, s[28:31], s46 offen offset:{16*j} sc0 sc1")
    A("s_mov_b64 exec, s[48:49]")
    A.label(f"{N}_svc_done")
    A("s_lshr_b32 s38, s33, 1"); A("s_and_b32 s39, s33, 1")
    compute_setup(A, 'row', "s38", "s39", 8, 12, 4)
    A("v_lshrrev_b32 v4, 2, v2"); A("v_and_b32 v5, 3, v2")
    A("s_lshr_b32 s50, s27, 2"); A("s_and_b32 s51, s27, 3"); A("s_lshl_b32 s51, s51, 3"); A("s_lshl_b32 s51, 1, s51")
    A("v_cmp_eq_u32 s[52:53], s26, v4"); A("v_cmp_eq_u32 s[54:55], s50, v5")
    A("v_mov_b32 v6, 0x01010101"); A("v_mov_b32 v7, s51")
    A("v_cndmask_b32 v48, 0, v6, s[52:53]"); A("v_cndmask_b32 v49, 0, v7, s[54:55]")
    A("v_or_b32 v48, v48, v49")
    def hook(ch, ks):
        if ch == 0 and ks == 2: A("s_waitcnt vmcnt(0)")
        if ch == 0 and ks == 3:
            l = A.uid(N)
            A("s_cmp_lg_u32 s33, 0"); A(f"s_cbranch_scc1 {l}")
            A("s_lshl_b32 s46, s26, 4"); A("s_add_u32 s46, s46, s27")
            A("v_mov_b32 v49, s46"); A("v_mov_b32 v50, 1")
            A("s_mov_b64 s[48:49], exec"); A("s_mov_b64 exec, 1")
            A("global_store_byte v49, v50, s[20:21] sc0 sc1")
            A("s_mov_b64 exec, s[48:49]")
            A.label(l)
        if ch == 4 and ks == 3:
            A("global_load_dword v49, v3, s[20:21] sc0 sc1")
        if ch == 5 and ks == 3:
            ok = A.uid(N); rt = A.uid(N)
            A("s_mov_b32 s46, 0x40000")
            A.label(rt)
            A("s_waitcnt vmcnt(0)")
            A("v_and_b32 v49, v49, v48")
            A("v_cmp_ne_u32 vcc, v49, v48")
            A(f"s_cbranch_vccz {ok}")
            A("s_sub_u32 s46, s46, 1"); A("s_cmp_eq_u32 s46, 0"); A(f"s_cbranch_scc1 {ok}")
            A("s_sleep 2")
            A("global_load_dword v49, v3, s[20:21] sc0 sc1")
            A(f"s_branch {rt}")
            A.label(ok)
            A("v_and_b32 v50, 31, v2"); A("v_lshlrev_b32 v50, 4, v50")
            A("s_lshl_b32 s46, s26, 7"); A("s_lshl_b32 s47, s38, 6"); A("s_add_u32 s46, s46, s47"); A("s_lshl_b32 s46, s46, 4"); A(f"s_add_u32 s46, s46, {WS_ST:#x}")
            A("buffer_load_dwordx4 v[128:131], v50, s[28:31], s46 offen sc0 sc1")
            A("buffer_load_dwordx4 v[132:135], v50, s[28:31], s46 offen offset:512 sc0 sc1")
            A("s_lshl_b32 s46, s27, 13"); A("s_lshl_b32 s47, s39, 8"); A("s_add_u32 s46, s46, s47"); A(f"s_add_u32 s46, s46, {WS_CSA:#x}")
            for j in range(16):
                A(f"buffer_load_dword {v(136+j)}, v3, s[28:31], s46 offen offset:{(j%8)*512} sc0 sc1")
                if j == 7: A("s_add_u32 s46, s46, 4096")
    compute_loop(A, 'row', 64, 8, 12, 16, 32, hook=hook)
    A.stamp(6)
    A("s_waitcnt vmcnt(0)")
    A.stamp(7)
    for j in range(1, 16, 2): A(f"v_add_f32 {v(136+j-1)}, {v(136+j-1)}, {v(136+j)}")
    for j in range(2, 16, 4): A(f"v_add_f32 {v(136+j-2)}, {v(136+j-2)}, {v(136+j)}")
    for j in range(4, 16, 8): A(f"v_add_f32 {v(136+j-4)}, {v(136+j-4)}, {v(136+j)}")
    A("v_add_f32 v136, v136, v144")
    A("s_lshl_b32 s46, s33, 8"); A("s_add_u32 s46, s46, 131072")
    A("v_add_u32 v50, s46, v3")
    A("ds_write_b32 v50, v136")
    A("v_lshrrev_b32 v51, 5, v2"); A("v_lshlrev_b32 v51, 4, v51"); A("v_add_u32 v51, s46, v51")
    A("s_waitcnt lgkmcnt(0)")
    for cb in range(2):
        for g in range(4):
            A(f"ds_read_b128 {v(16+16*cb+4*g,4)}, v51 offset:{cb*128+g*32}")
    A("s_lshr_b32 s50, s27, 2"); A("s_and_b32 s51, s27, 3")
    A(f"s_mov_b32 s52, {hexf(1.0)}"); A("s_cmp_eq_u32 s50, 0"); A(f"s_cselect_b32 s52, {hexf(QSCALE)}, s52")
    A("s_cmp_eq_u32 s50, 3"); A(f"s_cbranch_scc1 {N}_epi_h")
    for b in range(2):
        A(f"v_mul_f32 {v(52+2*b)}, s52, {v(129+4*b)}")
    for b in range(2):
        A(f"v_mul_f32 {v(53+2*b)}, -{v(128+4*b)}, {v(52+2*b)}".replace("v_mul_f32", "v_mul_f32_e64"))
    def apply_ln():
        for b in range(2):
            for cb in range(2):
                for j in range(8):
                    A(f"v_pk_mul_f32 {v(56+2*(j%4),2)}, {v(16+16*cb+2*j,2)}, {v(52+2*b,2)} op_sel:[0,1] op_sel_hi:[1,1]")
                    a = 64 + 16*(2*b+cb) + 2*j
                    A(f"v_pk_fma_f32 {v(a,2)}, {v(a,2)}, {v(52+2*b,2)}, {v(56+2*(j%4),2)} op_sel_hi:[1,0,1]")
    A("s_waitcnt lgkmcnt(0)")
    apply_ln()
    A("v_lshlrev_b32 v50, 4, v2")
    l = A.uid(N)
    A("s_cmp_lg_u32 s50, 2"); A(f"s_cbranch_scc1 {l}")
    A("v_bfe_u32 v4, v2, 2, 3"); A("v_lshlrev_b32 v4, 3, v4"); A("v_lshrrev_b32 v5, 5, v2"); A("v_lshl_add_u32 v4, v5, 2, v4")
    A("v_and_b32 v5, 3, v2"); A("v_add_u32 v4, v4, v5"); A("v_lshlrev_b32 v50, 4, v4")
    A.label(l)
    A("s_lshl_b32 s46, s50, 21")
    A("s_lshl_b32 s47, s51, 3"); A("s_lshl_b32 s53, s39, 2"); A("s_add_u32 s47, s47, s53"); A("s_lshl_b32 s47, s47, 16"); A("s_add_u32 s46, s46, s47")
    A("s_lshl_b32 s47, s26, 2"); A("s_lshl_b32 s53, s38, 1"); A("s_add_u32 s47, s47, s53"); A("s_lshl_b32 s47, s47, 10"); A("s_add_u32 s46, s46, s47")
    for b in range(2):
        for cb in range(2):
            a = 64 + 16*(2*b+cb)
            for half in range(2):
                d = 136 + 8*((2*b+cb) % 2) + 4*half
                for j in range(4):
                    A(f"v_cvt_pk_bf16_f32 {v(d+j)}, {v(a+8*half+2*j)}, {v(a+8*half+2*j+1)}")
                A(f"s_add_u32 s47, s46, {(2*cb+half)*65536 + b*1024}")
                A(f"buffer_store_dwordx4 {v(d,4)}, v50, s[28:31], s47 offen")
    A("s_endpgm")
    A.label(f"{N}_epi_h")
    A("s_and_b32 s53, s51, 1"); A("s_lshr_b32 s54, s51, 1"); A("s_add_u32 s54, s54, 1")
    A("s_sub_u32 s55, 0, s54"); A("s_cmp_eq_u32 s53, 0"); A("s_cselect_b32 s54, s54, s55")
    A("s_lshl_b32 s46, s26, 7"); A("s_lshl_b32 s47, s38, 6"); A("s_add_u32 s46, s46, s47"); A("s_add_u32 s46, s46, s54")
    A("v_and_b32 v4, 31, v2"); A("v_lshrrev_b32 v5, 5, v2"); A("v_lshlrev_b32 v5, 9, v5")
    for b in range(2):
        A(f"v_add_u32 {v(6)}, s46, v4")
        if b: A(f"v_add_u32 {v(6)}, 32, {v(6)}")
        A(f"v_mov_b32 {v(7)}, 0x800")
        A(f"v_cmp_lt_u32 vcc, {v(6)}, {v(7)}")
        A(f"v_mul_f32 {v(52+2*b)}, 1.0, {v(130+4*b)}")
        A(f"v_mul_f32_e64 {v(53+2*b)}, -{v(128+4*b)}, {v(130+4*b)}")
        A(f"v_cndmask_b32 {v(52+2*b)}, 0, {v(52+2*b)}, vcc")
        A(f"v_cndmask_b32 {v(53+2*b)}, 0, {v(53+2*b)}, vcc")
        A(f"v_and_b32 {v(6)}, 0x7ff, {v(6)}")
        A(f"v_lshrrev_b32 {v(7)}, 5, {v(6)}"); A(f"v_lshlrev_b32 {v(7)}, 15, {v(7)}")
        A(f"v_and_b32 {v(6)}, 31, {v(6)}"); A(f"v_lshl_add_u32 {v(6)}, {v(6)}, 4, {v(7)}")
        A(f"v_add_u32 {v(14+b)}, {v(6)}, v5")
    A("s_waitcnt lgkmcnt(0)")
    apply_ln()
    A(f"v_mov_b32 v4, {hexf(GK2)}"); A(f"v_mov_b32 v5, {hexf(GK1)}"); A("v_mov_b32 v6, 1.0"); A("v_mov_b32 v7, 1.0")
    A("s_lshl_b32 s47, s51, 3"); A("s_lshl_b32 s53, s39, 2"); A("s_add_u32 s47, s47, s53"); A("s_lshl_b32 s47, s47, 10"); A(f"s_add_u32 s46, s47, {WS_HS:#x}")
    for b in range(2):
        for cb in range(2):
            a = 64 + 16*(2*b+cb)
            for half in range(2):
                gelu_regs(A, [a+8*half+2*j for j in range(4)], 16, 4, 6)
                d = 136 + 8*((2*b+cb) % 2) + 4*half
                for j in range(4):
                    A(f"v_cvt_pk_bf16_f32 {v(d+j)}, {v(a+8*half+2*j)}, {v(a+8*half+2*j+1)}")
                A(f"s_add_u32 s47, s46, {(2*cb+half)*1024}")
                A(f"buffer_store_dwordx4 {v(d,4)}, {v(14+b)}, s[28:31], s47 offen")
    A("s_endpgm")
    A.label(f"{N}_loader")
    A("s_sub_u32 s38, s33, 4")
    loader_setup(A, 'row', 8, 9, 10, 4, "s34")
    A("s_lshl_b32 s40, s26, 7"); A("s_lshl_b32 s41, s38, 5"); A("s_add_u32 s40, s40, s41"); A("s_lshl_b32 s40, s40, 10")
    A("s_lshl_b32 s41, s38, 4"); A("s_mul_i32 s41, s41, s34"); A("s_add_u32 s41, s41, s35")
    A("s_lshl_b32 s42, s34, 2"); A("s_lshl_b32 s43, s34, 6")
    A("s_lshl_b32 s44, s38, 12"); A("s_lshl_b32 s45, s38, 12")
    loader_loop(A, 'row', "s[8:11]", "s[12:15]", 8, 9, 10, "s40", "s41", "128", "s43", "s42", "s44", "s45", "s46", "s37", "s47", "s48")
    A.label(f"{N}_done")
    A("s_endpgm")
    return A.text(), 152, LDS_A
```

```python
from common import *
from gemm64 import *

LDS_B = 49152 + 1024
NEGBIG = -1e30

def gen_B():
    A = Asm()
    N = "kB"
    A("s_cmp_ge_u32 s2, 768"); A(f"s_cbranch_scc1 {N}_done")
    A("s_load_dwordx2 s[4:5], s[0:1], 0")
    A("s_load_dwordx2 s[6:7], s[0:1], 40")
    A("s_load_dwordx2 s[22:23], s[0:1], 80")
    A("v_lshrrev_b32 v1, 6, v0"); A("v_and_b32 v2, 63, v0"); A("v_readfirstlane_b32 s33, v1")
    A("s_cmp_ge_u32 s2, 256"); A(f"s_cbranch_scc1 {N}_attn")
    A("s_and_b32 s24, s2, 7"); A("s_lshr_b32 s25, s2, 3")
    A("s_lshr_b32 s26, s25, 3"); A("s_lshl_b32 s27, s24, 2"); A("s_add_u32 s26, s26, s27")
    A("s_and_b32 s27, s25, 7")
    A("s_mul_i32 s34, s33, 12288")
    A("s_lshl_b32 s35, s33, 3")
    A("s_waitcnt lgkmcnt(0)")
    srd(A, 8, 4, 0x200000); srd(A, 12, 6, 0x80000); srd(A, 28, 22, WS_SIZE)
    ACC = 64; VX = 16; VWF = 128; VT = 4
    def pre():
        A("s_lshr_b32 s40, s33, 1"); A("s_and_b32 s41, s33, 1")
        A("s_lshl_b32 s42, s26, 6"); A("s_lshl_b32 s43, s40, 5"); A("s_add_u32 s42, s42, s43")
        A("s_lshl_b32 s43, s27, 6"); A("s_lshl_b32 s44, s41, 5"); A("s_add_u32 s43, s43, s44")
        A("v_and_b32 v12, 31, v2"); A("v_lshrrev_b32 v13, 5, v2")
        A("v_lshlrev_b32 v14, 10, v12"); A("v_lshl_add_u32 v14, v13, 3, v14")
        A("s_lshl_b32 s44, s42, 10"); A("s_lshl_b32 s45, s43, 1"); A("s_add_u32 s44, s44, s45")
        for g in range(4):
            A(f"buffer_load_dwordx2 {v(144+2*g,2)}, v14, s[8:11], s44 offen offset:{g*16}")
        A("v_lshlrev_b32 v15, 4, v12")
        A("s_lshl_b32 s45, s42, 4"); A(f"s_add_u32 s45, s45, {WS_ST:#x}")
        A("buffer_load_dwordx2 v[152:153], v15, s[28:31], s45 offen")
        return 5
    gemm64(A, [Seg(WS_HS, 32, "s35", 8, "s[12:15]", 1024, 'perm', ACC)], 6, "s[28:31]", "s26", "s27", "s33", "s34", 2, VX, VWF, VT, 50, pre_hook=pre)
    A("s_nop 15")
    reduce_scatter(A, [ACC], "s33", "s34", 12288, 2, VT)
    A("s_waitcnt vmcnt(0)")
    A("v_mul_f32_e64 v154, -v152, v153")
    A("v_mov_b32 v155, v154"); A("v_mov_b32 v152, v153")
    for g in range(4):
        for p_ in range(2):
            src = 144 + 2*g + p_
            A(f"v_lshlrev_b32 v16, 16, {v(src)}"); A(f"v_and_b32 v17, 0xffff0000, {v(src)}")
            a = ACC + 4*g + 2*p_
            A(f"v_pk_fma_f32 {v(a,2)}, v[16:17], v[152:153], {v(a,2)}")
            A(f"v_pk_add_f32 {v(a,2)}, {v(a,2)}, v[154:155]")
    A(f"v_pk_add_f32 v[18:19], {v(ACC,2)}, {v(ACC+2,2)}")
    A(f"v_pk_mul_f32 v[20:21], {v(ACC,2)}, {v(ACC,2)}")
    A(f"v_pk_fma_f32 v[20:21], {v(ACC+2,2)}, {v(ACC+2,2)}, v[20:21]")
    for j in range(4, 16, 2):
        A(f"v_pk_add_f32 v[18:19], v[18:19], {v(ACC+j,2)}")
        A(f"v_pk_fma_f32 v[20:21], {v(ACC+j,2)}, {v(ACC+j,2)}, v[20:21]")
    A("v_add_f32 v18, v18, v19"); A("v_add_f32 v19, v20, v21")
    A("v_mov_b32 v20, v18"); A("v_mov_b32 v21, v19"); A("s_nop 1")
    A("v_permlane32_swap_b32 v18, v20"); A("v_permlane32_swap_b32 v19, v21"); A("s_nop 1")
    A("v_add_f32 v18, v18, v20"); A("v_add_f32 v19, v19, v21")
    for j in range(8): A(f"v_cvt_pk_bf16_f32 {v(24+j)}, {v(ACC+2*j)}, {v(ACC+2*j+1)}")
    A("s_lshl_b32 s44, s26, 1"); A("s_add_u32 s44, s44, s40"); A("s_lshl_b32 s44, s44, 5")
    A("s_lshl_b32 s45, s27, 2"); A("s_add_u32 s44, s44, s45"); A("s_lshl_b32 s45, s41, 1"); A("s_add_u32 s44, s44, s45")
    A("s_lshl_b32 s44, s44, 10"); A(f"s_add_u32 s44, s44, {WS_X1:#x}")
    A("v_lshlrev_b32 v22, 4, v2")
    A("buffer_store_dwordx4 v[24:27], v22, s[28:31], s44 offen")
    A("buffer_store_dwordx4 v[28:31], v22, s[28:31], s44 offen offset:1024")
    A("s_lshl_b32 s44, s42, 7"); A("s_lshl_b32 s45, s27, 1"); A("s_add_u32 s45, s45, s41"); A("s_lshl_b32 s45, s45, 3"); A("s_add_u32 s44, s44, s45"); A(f"s_add_u32 s44, s44, {WS_ST1:#x}")
    A("v_lshlrev_b32 v23, 7, v12")
    A("s_mov_b32 exec_hi, 0")
    A("buffer_store_dwordx2 v[18:19], v23, s[28:31], s44 offen")
    A("s_endpgm")
    A.label(f"{N}_attn")
    A("s_sub_u32 s25, s2, 256"); A("s_and_b32 s24, s25, 7"); A("s_lshr_b32 s25, s25, 3")
    A("s_and_b32 s26, s25, 1"); A("s_lshl_b32 s27, s24, 1"); A("s_add_u32 s26, s26, s27")
    A("s_lshr_b32 s27, s25, 1")
    A("s_lshl_b32 s34, s26, 2"); A("s_add_u32 s35, s34, s33")
    A("s_waitcnt lgkmcnt(0)")
    A("s_lshl_b32 s36, s27, 16")
    A("s_add_u32 s8, s22, s36"); A("s_addc_u32 s9, s23, 0"); A(f"s_add_u32 s8, s8, {WS_K:#x}"); A("s_addc_u32 s9, s9, 0"); A("s_mov_b32 s10, 0x10000"); A("s_mov_b32 s11, 0x20000")
    A("s_add_u32 s12, s22, s36"); A("s_addc_u32 s13, s23, 0"); A(f"s_add_u32 s12, s12, {WS_V:#x}"); A("s_addc_u32 s13, s13, 0"); A("s_mov_b32 s14, 0x10000"); A("s_mov_b32 s15, 0x20000")
    srd(A, 28, 22, WS_SIZE)
    A("v_lshlrev_b32 v3, 4, v2")
    A("s_mul_i32 s37, s33, 3"); A("s_add_u32 s38, s34, s37"); A("s_sub_u32 s38, s38, 8"); A("s_lshl_b32 s38, s38, 10")
    A("s_lshl_b32 s37, s37, 10")
    A("s_mov_b32 s39, 0")
    for j in range(3):
        A(f"s_add_u32 s40, s38, {j*1024}")
        A("v_add_u32 v4, s40, v3")
        A(f"s_add_u32 m0, s37, {j*1024}"); A("s_nop 0")
        A(f"buffer_load_dwordx4 v4, s[8:11], s39 offen lds")
        A(f"s_add_u32 m0, s37, {j*1024 + 12288}"); A("s_nop 0")
        A(f"buffer_load_dwordx4 v4, s[12:15], s39 offen lds")
    VQ = 8
    A("s_lshl_b32 s40, s35, 10"); A("s_add_u32 s40, s40, s36"); A(f"s_add_u32 s40, s40, {WS_Q:#x}")
    A(f"buffer_load_dwordx4 {v(VQ,4)}, v3, s[28:31], s40 offen")
    A("v_mov_b32 v5, 0x3f803f80"); A("v_lshlrev_b32 v6, 2, v0"); A("ds_write_b32 v6, v5 offset:24576")
    VKA, VVA, VST = 6, 7, 12
    A("v_lshrrev_b32 v13, 5, v2"); A("v_lshlrev_b32 v14, 7, v13")
    A("v_bfe_u32 v15, v2, 1, 1"); A("v_lshl_add_u32 v14, v15, 6, v14")
    A("v_bfe_u32 v15, v2, 2, 2"); A("v_lshl_add_u32 v14, v15, 4, v14")
    A("v_and_b32 v15, 1, v2"); A("v_lshl_add_u32 v14, v15, 3, v14")
    A("v_add_u32 v14, 12288, v14")
    A("v_lshlrev_b32 v13, 7, v13"); A("v_xor_b32 v13, 128, v13"); A("v_add_u32 v13, 24576, v13")
    A("v_bfe_u32 v15, v2, 4, 1"); A("v_cmp_eq_u32 s[44:45], 0, v15")
    A("v_mov_b32 v15, 1024")
    A(f"v_cndmask_b32 {v(VST)}, 0, v15, s[44:45]")
    A("s_sub_u32 s46, 8, s34"); A("s_cmp_ge_u32 s26, 2"); A("s_cselect_b32 s46, s33, s46"); A("s_lshl_b32 s46, s46, 10")
    A("v_add_u32 v14, s46, v14")
    A(f"v_cndmask_b32 {v(VVA)}, v13, v14, s[44:45]")
    A(f"v_add_u32 {v(VKA)}, s46, v3")
    KF = [16, 20]; SB = [32, 48]; M0, M8, NM, PP, VF, O, MX = 64, 80, 96, 112, [120, 128], 136, 24
    A("v_and_b32 v13, 31, v2"); A("v_lshrrev_b32 v14, 5, v2"); A("v_lshlrev_b32 v14, 2, v14"); A("v_sub_u32 v13, v13, v14")
    A(f"v_mov_b32 v14, {hexf(NEGBIG)}")
    for r0 in (0, 8):
        for r in range(r0, r0 + 8):
            A(f"v_cmp_gt_i32 s[{48+2*(r-r0)}:{49+2*(r-r0)}], {8*(r//4) + r%4}, v13")
        for r in range(r0, r0 + 8):
            A(f"v_cndmask_b32 {v(M0+r)}, v14, 0, s[{48+2*(r-r0)}:{49+2*(r-r0)}]")
            A(f"v_cndmask_b32 {v(M8+r)}, 0, v14, s[{48+2*(r-r0)}:{49+2*(r-r0)}]")
    A.stamp(1)
    A("s_waitcnt vmcnt(0) lgkmcnt(0)")
    A("s_barrier")
    A.stamp(2)
    def ninstr(i0): return sum(1 for x in A.L[i0:] if x.startswith("    ") and not x.strip().startswith(";"))
    def pad(i0, need):
        n = ninstr(i0)
        if n < need: A(f"s_nop {need - n - 1}")
    def rdK(f, off): A(f"ds_read_b128 {v(f,4)}, {v(VKA)} offset:{off}")
    def rdV(f):
        for u in range(2):
            for e2 in range(2):
                A(f"ds_read_b64_tr_b16 {v(f+4*u+2*e2,2)}, {v(VVA)} offset:{(4*u+2*e2)*128}")
    def qk(S, kf, C):
        A(f"v_mfma_f32_32x32x16_bf16 {v(S,16)}, {v(kf,4)}, {v(VQ,4)}, {C}")
        return len(A.L)
    def maxred(S, first):
        for i in range(8):
            if first and i == 0: A(f"v_max_f32 {v(MX)}, {v(S)}, {v(S+1)}")
            else: A(f"v_max3_f32 {v(MX)}, {v(S+2*i)}, {v(S+2*i+1)}, {v(MX)}")
    def finish_max():
        A(f"v_mov_b32 v25, {v(MX)}"); A("s_nop 1")
        A(f"v_permlane32_swap_b32 {v(MX)}, v25"); A("s_nop 1")
        A(f"v_max_f32 {v(MX)}, {v(MX)}, v25")
        A(f"v_sub_f32 {v(NM)}, 0, {v(MX)}")
        for r in range(1, 16): A(f"v_mov_b32 {v(NM+r)}, {v(NM)}")
    def expcvt(S):
        for i in range(0, 16, 4):
            for k in range(4): A(f"v_exp_f32 {v(S+i+k)}, {v(S+i+k)}")
            if i == 12: A("s_nop 0")
            if i > 0:
                A(f"v_cvt_pk_bf16_f32 {v(PP+(i-4)//2)}, {v(S+i-4)}, {v(S+i-3)}"); A(f"v_cvt_pk_bf16_f32 {v(PP+(i-4)//2+1)}, {v(S+i-2)}, {v(S+i-1)}")
        A(f"v_cvt_pk_bf16_f32 {v(PP+6)}, {v(S+12)}, {v(S+13)}"); A(f"v_cvt_pk_bf16_f32 {v(PP+7)}, {v(S+14)}, {v(S+15)}")
    def pv(vf, first):
        A("s_nop 1")
        A(f"v_mfma_f32_32x32x16_bf16 {v(O,16)}, {v(vf,4)}, {v(PP,4)}, {'0' if first else v(O,16)}")
        A(f"v_mfma_f32_32x32x16_bf16 {v(O,16)}, {v(vf+4,4)}, {v(PP+4,4)}, {v(O,16)}")
        return len(A.L)
    A("s_cmp_lt_u32 s26, 2"); A(f"s_cbranch_scc1 {N}_slow")
    Cof = lambda j, a, b, c: (v(a,16) if j == 0 else v(c,16) if j == 8 else b)
    rdK(KF[0], 0); rdK(KF[1], 1024)
    A("s_waitcnt lgkmcnt(1)")
    mk = [None]*9
    mk[0] = qk(SB[0], KF[0], Cof(0, M0, "0", M8))
    for j in range(9):
        if j + 1 <= 8:
            A("s_waitcnt lgkmcnt(0)")
            mk[j+1] = qk(SB[(j+1)%2], KF[(j+1)%2], Cof(j+1, M0, "0", M8))
            if j + 2 <= 8: rdK(KF[j%2], (j+2)*1024)
        pad(mk[j], 12)
        maxred(SB[j%2], j == 0)
    A.stamp(3)
    finish_max()
    for r in range(16):
        A(f"v_sub_f32 {v(M0+r)}, {v(M0+r)}, {v(MX)}"); A(f"v_sub_f32 {v(M8+r)}, {v(M8+r)}, {v(MX)}")
    rdK(KF[0], 0); rdK(KF[1], 1024); rdV(VF[0])
    A("s_waitcnt lgkmcnt(5)")
    mk[0] = qk(SB[0], KF[0], Cof(0, M0, v(NM,16), M8))
    for j in range(9):
        if j + 1 <= 8:
            A("s_waitcnt lgkmcnt(4)")
            mk[j+1] = qk(SB[(j+1)%2], KF[(j+1)%2], Cof(j+1, M0, v(NM,16), M8))
            if j + 2 <= 8: rdK(KF[j%2], (j+2)*1024)
            A(f"v_add_u32 {v(VVA)}, {v(VVA)}, {v(VST)}")
            rdV(VF[(j+1)%2])
        pad(mk[j], 12)
        expcvt(SB[j%2])
        newer = (1 if j + 2 <= 8 else 0) + (4 if j + 1 <= 8 else 0)
        A(f"s_waitcnt lgkmcnt({newer})")
        last = pv(VF[j%2], j == 0)
    A(f"s_branch {N}_fin")
    A.label(f"{N}_slow")
    A(f"v_mov_b32 {v(MX)}, v14")
    A(f"v_mov_b32 v26, {v(VKA)}")
    A("s_mov_b32 s47, s35")
    lp, ex = A.uid(N), A.uid(N)
    A.label(lp)
    A("s_cmp_eq_u32 s47, 0"); A(f"s_cbranch_scc1 {ex}")
    A(f"ds_read_b128 {v(KF[0],4)}, v26"); A("s_waitcnt lgkmcnt(0)")
    qk(SB[0], KF[0], "0"); A("s_nop 15")
    maxred(SB[0], False)
    A("v_add_u32 v26, 1024, v26"); A("s_sub_u32 s47, s47, 1"); A(f"s_branch {lp}")
    A.label(ex)
    A(f"ds_read_b128 {v(KF[0],4)}, v26"); A("s_waitcnt lgkmcnt(0)")
    qk(SB[0], KF[0], v(M8,16)); A("s_nop 15")
    maxred(SB[0], False)
    finish_max()
    for r in range(16): A(f"v_sub_f32 {v(M8+r)}, {v(M8+r)}, {v(MX)}")
    for r in range(16): A(f"v_mov_b32 {v(O+r)}, 0")
    A("s_mov_b32 s47, s35")
    lp, ex = A.uid(N), A.uid(N)
    def slow_blk(C):
        A(f"ds_read_b128 {v(KF[0],4)}, {v(VKA)}"); rdV(VF[0]); A("s_waitcnt lgkmcnt(0)")
        qk(SB[0], KF[0], C); A("s_nop 15")
        expcvt(SB[0])
        pv(VF[0], False)
    A.label(lp)
    A("s_cmp_eq_u32 s47, 0"); A(f"s_cbranch_scc1 {ex}")
    slow_blk(v(NM,16))
    A(f"v_add_u32 {v(VKA)}, 1024, {v(VKA)}"); A(f"v_add_u32 {v(VVA)}, {v(VVA)}, {v(VST)}")
    A("s_sub_u32 s47, s47, 1"); A(f"s_branch {lp}")
    A.label(ex)
    slow_blk(v(M8,16))
    A.label(f"{N}_fin")
    A.stamp(4)
    A("s_nop 15")
    A(f"v_rcp_f32 v25, {v(O+8)}"); A("s_nop 0")
    for r in range(8): A(f"v_mul_f32 {v(O+r)}, {v(O+r)}, v25")
    for j in range(4): A(f"v_cvt_pk_bf16_f32 {v(28+j)}, {v(O+2*j)}, {v(O+2*j+1)}")
    A("s_lshl_b32 s40, s35, 5"); A("s_add_u32 s40, s40, s27"); A("s_lshl_b32 s40, s40, 10"); A(f"s_add_u32 s40, s40, {WS_O:#x}")
    A("buffer_store_dwordx4 v[28:31], v3, s[28:31], s40 offen")
    A.label(f"{N}_done")
    A("s_endpgm")
    return A.text(), 160, LDS_B
```

```python
from common import *
from gemm64 import *

LDS_D = 4 * 24576
def gen_D():
    A = Asm()
    N = "kD"
    A("s_cmp_ge_u32 s2, 256"); A(f"s_cbranch_scc1 {N}_done")
    A("s_load_dwordx2 s[4:5], s[0:1], 0")
    A("s_load_dwordx2 s[6:7], s[0:1], 16")
    A("s_load_dwordx2 s[16:17], s[0:1], 56")
    A("s_load_dwordx2 s[18:19], s[0:1], 64")
    A("s_load_dwordx2 s[22:23], s[0:1], 80")
    A("v_lshrrev_b32 v1, 6, v0"); A("v_and_b32 v2, 63, v0"); A("v_readfirstlane_b32 s33, v1")
    A("s_and_b32 s24, s2, 7"); A("s_lshr_b32 s25, s2, 3")
    A("s_lshr_b32 s26, s25, 3"); A("s_lshl_b32 s27, s24, 2"); A("s_add_u32 s26, s26, s27")
    A("s_and_b32 s27, s25, 7")
    A("s_mul_i32 s34, s33, 24576")
    A("s_mul_i32 s35, s33, 28")
    A("s_lshl_b32 s36, s33, 3")
    A("s_waitcnt lgkmcnt(0)")
    srd(A, 8, 4, 0x200000); srd(A, 12, 6, 0x80000); srd(A, 40, 16, 0x1C0000); srd(A, 44, 18, 0x200000); srd(A, 28, 22, WS_SIZE)
    ACH, ACS, VX, VWF, VT = 128, 192, 16, 96, 4
    XR, X1R = 112, 120
    def pre():
        A("s_lshr_b32 s60, s33, 1"); A("s_and_b32 s61, s33, 1")
        A("s_lshl_b32 s62, s26, 6"); A("s_lshl_b32 s63, s60, 5"); A("s_add_u32 s62, s62, s63")
        A("s_lshl_b32 s63, s27, 6"); A("s_lshl_b32 s64, s61, 5"); A("s_add_u32 s63, s63, s64")
        A("v_and_b32 v12, 31, v2"); A("v_lshrrev_b32 v13, 5, v2")
        A("v_lshlrev_b32 v14, 10, v12"); A("v_lshl_add_u32 v14, v13, 3, v14")
        A("s_lshl_b32 s64, s62, 10"); A("s_lshl_b32 s65, s63, 1"); A("s_add_u32 s64, s64, s65")
        for g in range(4):
            A(f"buffer_load_dwordx2 {v(XR+2*g,2)}, v14, s[8:11], s64 offen offset:{g*16}")
        A("s_lshl_b32 s59, s26, 1"); A("s_add_u32 s59, s59, s60"); A("s_lshl_b32 s59, s59, 5")
        A("s_lshl_b32 s65, s27, 2"); A("s_add_u32 s59, s59, s65"); A("s_lshl_b32 s65, s61, 1"); A("s_add_u32 s59, s59, s65")
        A("s_lshl_b32 s59, s59, 10"); A(f"s_add_u32 s59, s59, {WS_X1:#x}")
        A(f"buffer_load_dwordx4 {v(X1R,4)}, v4, s[28:31], s59 offen")
        A(f"buffer_load_dwordx4 {v(X1R+4,4)}, v4, s[28:31], s59 offen offset:1024")
        return 6
    segs = [Seg(WS_O, 32, "s36", 8, "s[12:15]", 1024, 'nat', ACS), Seg(WS_U, 112, "s35", 28, "s[40:43]", 1024, 'perm', ACH)]
    gemm64(A, segs, 10, "s[28:31]", "s26", "s27", "s33", "s34", 2, VX, VWF, VT, 50, pre_hook=pre)
    A("s_nop 15")
    reduce_scatter(A, [ACH, ACS], "s33", "s34", 24576, 2, VT)
    A("s_waitcnt vmcnt(0)")
    A(f"v_mov_b32 v16, {hexf(-LOG2E)}"); A(f"v_mov_b32 v17, {hexf(-LOG2E)}"); A("v_mov_b32 v18, 1.0"); A("v_mov_b32 v19, 1.0")
    for j in range(8):
        A(f"v_lshlrev_b32 v20, 16, {v(X1R+j)}"); A(f"v_and_b32 v21, 0xffff0000, {v(X1R+j)}")
        A(f"v_pk_add_f32 {v(ACH+2*j,2)}, {v(ACH+2*j,2)}, v[20:21]")
    for j in range(8): A(f"v_pk_mul_f32 {v(32+2*j,2)}, {v(ACH+2*j,2)}, v[16:17]")
    for j in range(16): A(f"v_exp_f32 {v(32+j)}, {v(32+j)}")
    A("s_nop 0")
    for j in range(8): A(f"v_pk_add_f32 {v(32+2*j,2)}, {v(32+2*j,2)}, v[18:19]")
    for j in range(16): A(f"v_rcp_f32 {v(32+j)}, {v(32+j)}")
    A("s_nop 0")
    for j in range(8): A(f"v_pk_mul_f32 {v(ACH+2*j,2)}, {v(ACH+2*j,2)}, {v(32+2*j,2)}")
    for j in range(8):
        A(f"v_lshlrev_b32 v20, 16, {v(XR+j)}"); A(f"v_and_b32 v21, 0xffff0000, {v(XR+j)}")
        A(f"v_pk_fma_f32 {v(ACH+2*j,2)}, {v(ACH+2*j,2)}, {v(ACS+2*j,2)}, v[20:21]")
    for j in range(8): A(f"v_cvt_pk_bf16_f32 {v(48+j)}, {v(ACH+2*j)}, {v(ACH+2*j+1)}")
    for g in range(4):
        A(f"buffer_store_dwordx2 {v(48+2*g,2)}, v14, s[44:47], s64 offen offset:{g*16}")
    A.label(f"{N}_done")
    A("s_endpgm")
    return A.text(), 256, LDS_D
```

```python
import gen
from common import *
K = gen.all_kernels("ABCD")
K2 = []
for i, (n, g, b, t, vg, l) in enumerate(K):
    pre = f"""    s_cmp_lg_u32 s2, 0
    s_cbranch_scc1 {n}_nodbg
    s_load_dwordx2 s[90:91], s[0:1], 72
    s_waitcnt lgkmcnt(0)
    v_mov_b32 v1, {0x100+i}
    v_mov_b32 v2, {4*(i+4) if i else 0}
    s_mov_b64 s[88:89], exec
    s_mov_b64 exec, 1
""" + ("    global_store_dword v2, v1, s[90:91]\n" if i else "") + f"""    s_waitcnt vmcnt(0)
    s_mov_b64 exec, s[88:89]
{n}_nodbg:
"""
    K2.append((n, g, b, pre + t, vg, l))
open("var_dbg.s", "w").write(gen.build(K2))
```

```python
from common import *
def gen_Z(KL, extra):
    A = Asm()
    A("s_cmp_lg_u32 s2, 0"); A("s_cbranch_scc1 kZ_done")
    A("s_load_dwordx2 s[4:5], s[0:1], 80"); A("s_load_dwordx2 s[6:7], s[0:1], 72")
    A("s_waitcnt lgkmcnt(0)")
    A(f"v_mov_b32 v1, {WS_DBG:#x}"); A("global_load_dword v2, v1, s[4:5]"); A("s_waitcnt vmcnt(0)")
    outreg = 20
    for i, (n, g, b, *_r) in enumerate(KL):
        nw = b // 64
        tot = g * nw
        A("v_mov_b32 v10, 0x7fffffff"); A("v_mov_b32 v11, 0x80000000")
        A("v_mov_b32 v3, v0")
        lp = A.uid("kZ");
        A(f"s_mov_b32 s10, {(tot + 63) // 64}")
        A.label(lp)
        sh = {4: 2, 8: 3}[nw]
        A(f"v_lshrrev_b32 v4, {sh}, v3"); A(f"v_and_b32 v5, {nw-1}, v3")
        A("v_lshlrev_b32 v4, 4, v4"); A("v_add_u32 v4, v4, v5"); A("v_lshlrev_b32 v4, 4, v4")
        A(f"v_add_u32 v4, {WS_DBG + i*0x40000:#x}, v4")
        A("global_load_dwordx4 v[6:9], v4, s[4:5]"); A("s_waitcnt vmcnt(0)")
        A("v_sub_u32 v6, v6, v2"); A("v_sub_u32 v8, v8, v2")
        A("v_min_i32 v10, v10, v6"); A("v_max_i32 v11, v11, v8")
        A("v_add_u32 v3, 64, v3")
        A("s_sub_u32 s10, s10, 1"); A("s_cmp_gt_u32 s10, 0"); A(f"s_cbranch_scc1 {lp}")
        A("s_mov_b32 s11, 0x7fffffff"); A("s_mov_b32 s12, 0x80000000")
        for l in range(64):
            A(f"v_readlane_b32 s13, v10, {l}"); A(f"v_readlane_b32 s14, v11, {l}"); A("s_nop 3")
            A("s_min_i32 s11, s11, s13"); A("s_max_i32 s12, s12, s14")
        A(f"v_mov_b32 v{outreg+2*i}, s11"); A(f"v_mov_b32 v{outreg+2*i+1}, s12")
    k = 2 * len(KL)
    for (ki, wg, wv, si) in extra:
        if k >= 16: break
        off = WS_DBG + 0x100000 * (1 + ki) + (wg * 16 + wv) * 64 + 4 * si
        A(f"v_mov_b32 v1, {off:#x}"); A(f"global_load_dword v{outreg+k}, v1, s[4:5]")
        k += 1
    A("s_waitcnt vmcnt(0)")
    A("s_mov_b64 exec, 1"); A("v_mov_b32 v1, 0")
    for j in range(k): A(f"global_store_dword v1, v{outreg+j}, s[6:7] offset:{4*j}")
    A("s_waitcnt vmcnt(0)")
    A.label("kZ_done")
    A("s_endpgm")
    return ("kZ", 1, 64, A.text(), 64, 0)
```

```python
import sys, gen
from common import *
from kZ import gen_Z
extra = eval(sys.argv[1]) if len(sys.argv) > 1 else [(0,8,0,1),(0,8,0,2),(0,8,0,4),(0,8,0,5),(3,8,0,1),(3,8,0,2),(3,8,0,3),(3,8,0,4)]
KL = gen.all_kernels("ABCD", True)
KS = [(n, g, b, gen.add_stamps(n, t, i), vg, l) for i, (n, g, b, t, vg, l) in enumerate(KL)]
Z = gen_Z(KL, extra)
open("var_diag.s", "w").write(gen.build(KS + [Z]))
```

```python
from common import *

OPT = dict(noX=False, noW=False, noM=False, sameRT=False, sameCT=False)
class Seg:
    def __init__(self, xbase, nks, ks0, nsteps, wsrd, wstride, order, acc):
        self.xbase, self.nks, self.ks0, self.nsteps, self.wsrd, self.wstride, self.order, self.acc = xbase, nks, ks0, nsteps, wsrd, wstride, order, acc

def gemm64(A, segs, P, srdWS, sRT, sCT, sWave, sLds, vLane, vX, vWf, vT, sT, pre_hook=None):
    vL16, vWg, vWaN, vWaP = vT, vT+1, vT+2, vT+4
    t0, t1 = vT+6, vT+7
    l = vLane
    A(f"v_lshlrev_b32 {v(vL16)}, 4, {v(l)}")
    A(f"v_bfe_u32 {v(t0)}, {v(l)}, 4, 1"); A(f"v_lshlrev_b32 {v(t0)}, 2, {v(t0)}")
    A(f"v_and_b32 {v(t1)}, 7, {v(l)}"); A(f"v_xor_b32 {v(t0)}, {v(t0)}, {v(t1)}"); A(f"v_lshlrev_b32 {v(t0)}, 4, {v(t0)}")
    A(f"v_lshrrev_b32 {v(t1)}, 3, {v(l)}"); A(f"v_lshl_add_u32 {v(vWg)}, {v(t1)}, 10, {v(t0)}")
    orders = set(s_.order for s_ in segs)
    A(f"v_bfe_u32 {v(t0)}, {v(l)}, 4, 1"); A(f"v_lshlrev_b32 {v(t0)}, 1, {v(t0)}")
    A(f"v_bfe_u32 {v(t1)}, {v(l)}, 1, 1"); A(f"v_add_u32 {v(t0)}, {v(t0)}, {v(t1)}")
    A(f"v_bfe_u32 {v(t1)}, {v(l)}, 3, 1"); A(f"v_lshlrev_b32 {v(t1)}, 2, {v(t1)}")
    A(f"v_xor_b32 {v(t0)}, {v(t0)}, {v(t1)}")
    A(f"v_lshlrev_b32 {v(t0)}, 4, {v(t0)}")
    A(f"v_and_b32 {v(t1)}, 1, {v(l)}"); A(f"v_lshl_add_u32 {v(t0)}, {v(t1)}, 3, {v(t0)}")
    A(f"v_add_u32 {v(t0)}, {sLds}, {v(t0)}")
    for (o, reg, sh) in (('nat', vWaN, 3), ('perm', vWaP, 2)):
        if o not in orders: continue
        A(f"v_lshrrev_b32 {v(t1)}, 5, {v(l)}"); A(f"v_lshlrev_b32 {v(t1)}, {sh}, {v(t1)}")
        A(f"v_bfe_u32 {v(reg+1)}, {v(l)}, 2, 2"); A(f"v_add_u32 {v(t1)}, {v(t1)}, {v(reg+1)}")
        A(f"v_lshl_add_u32 {v(reg)}, {v(t1)}, 7, {v(t0)}")
        A(f"v_xor_b32 {v(reg+1)}, 64, {v(reg)}")
    steps = []
    for si, sg in enumerate(segs):
        for j in range(sg.nsteps): steps.append((si, j))
    T = len(steps)
    sX0, sX1, sW, sTmp = f"s{sT}", f"s{sT+1}", f"s{sT+2}", f"s{sT+3}"
    cur_seg = [-1]
    def seg_init(si):
        sg = segs[si]
        A(f"s_lshl_b32 {sX0}, {sRT}, 1")
        if OPT['sameRT']: A(f"s_mov_b32 {sX0}, 0")
        A(f"s_mul_i32 {sX0}, {sX0}, {sg.nks}"); A(f"s_add_u32 {sX0}, {sX0}, {sg.ks0}")
        A(f"s_lshl_b32 {sX0}, {sX0}, 10"); A(f"s_add_u32 {sX0}, {sX0}, {sg.xbase:#x}")
        A(f"s_add_u32 {sX1}, {sX0}, {sg.nks*1024:#x}")
        A(f"s_lshl_b32 {sW}, {sg.ks0}, 14"); A(f"s_lshl_b32 {sTmp}, {sCT}, 7")
        if OPT['sameCT']: A(f"s_mov_b32 {sTmp}, 0")
        A(f"s_add_u32 {sW}, {sW}, {sTmp}")
    def issue_list(t):
        si, j = steps[t]
        sg = segs[si]
        U = []
        pre = Asm()
        if si != cur_seg[0]:
            save = A.L; A.L = pre.L
            seg_init(si); cur_seg[0] = si
            A.L = save
        P0 = [x.strip() for x in pre.L]
        slot = t % P
        xo = (j % 4) * 1024
        if not OPT['noX']:
            U.append(P0 + [f"buffer_load_dwordx4 {v(vX+8*slot,4)}, {v(vL16)}, {srdWS}, {sX0} offen offset:{xo}"]); P0 = []
            u = [f"buffer_load_dwordx4 {v(vX+8*slot+4,4)}, {v(vL16)}, {srdWS}, {sX1} offen offset:{xo}"]
            if j % 4 == 3: u += [f"s_add_u32 {sX0}, {sX0}, 4096", f"s_add_u32 {sX1}, {sX1}, 4096"]
            U.append(u)
        if not OPT['noW']:
            U.append(P0 + [f"s_add_u32 m0, {sLds}, {slot*2048}", f"s_add_u32 {sTmp}, {sW}, 8192",
                      f"buffer_load_dwordx4 {v(vWg)}, {sg.wsrd}, {sW} offen lds"])
            U.append([f"s_add_u32 m0, m0, 1024", f"s_add_u32 {sW}, {sW}, 16384",
                      f"buffer_load_dwordx4 {v(vWg)}, {sg.wsrd}, {sTmp} offen lds"])
        return U
    def issue(t):
        for u in issue_list(t):
            for x in u: A(x)
    def reads(t, f):
        si, j = steps[t]; sg = segs[si]
        reg = vWaN if sg.order == 'nat' else vWaP
        es = 4 if sg.order == 'nat' else 8
        slot = t % P
        return [f"ds_read_b64_tr_b16 {v(f+4*cb+2*e2,2)}, {v(reg+cb)} offset:{slot*2048 + es*e2*128}" for cb in range(2) for e2 in range(2)]
    first = set()
    def mf(t, f):
        si, j = steps[t]; sg = segs[si]
        slot = t % P
        L = []
        for (b, cb) in ((0,0),(1,0),(0,1),(1,1)):
            d = v(sg.acc + 16*(2*b+cb), 16)
            c = d if (sg.acc in first) else "0"
            L.append(f"v_mfma_f32_32x32x16_bf16 {d}, {v(f+4*cb,4)}, {v(vX+8*slot+4*b,4)}, {c}")
        first.add(sg.acc)
        return L
    NV = 4 - (2 if OPT['noX'] else 0) - (2 if OPT['noW'] else 0)
    issued = 0
    A.stamp(0)
    for t in range(min(P, T)):
        issue(t); issued += 1
    A.stamp(1)
    extra = 0
    if pre_hook: extra = pre_hook()
    F = [vWf, vWf + 8]
    A(f"s_waitcnt vmcnt({min(63, NV*(issued-1) + extra)})")
    A.stamp(2)
    for r in reads(0, F[0]): A(r)
    for t in range(T):
        if t == T // 2: A.stamp(3)
        cur, nxt = F[t % 2], F[(t+1) % 2]
        M = mf(t, cur)
        U = []
        if t >= 1 and issued < T and issued == t - 1 + P:
            U = issue_list(issued)
        if t + 1 < T:
            n_after = NV * (issued - (t + 2))
            if t + 1 < min(P, T): n_after += extra
            A(f"s_waitcnt vmcnt({min(63, n_after)}) lgkmcnt(0)")
            R = reads(t + 1, nxt)
        else:
            A("s_waitcnt lgkmcnt(0)")
            R = []
        seq = [[M[0]] + R[0:2], [M[1]] + R[2:4], [M[2]], [M[3]]]
        for k in range(4):
            for x in seq[k]: A(x)
            if k < len(U):
                for x in U[k]: A(x)
        if U: issued += 1

def reduce_scatter(A, accs, sWave, sLds, region, vLane, vT, nbar_label=None):
    l16 = vT
    A.stamp(4)
    A(f"v_lshlrev_b32 {v(l16)}, 4, {v(vLane)}")
    A(f"v_add_u32 {v(vT+1)}, {sLds}, {v(l16)}")
    end = A.uid("rs_end")
    labels = [A.uid("rs_w") for _ in range(4)]
    for w in range(1, 4):
        A(f"s_cmp_eq_u32 {sWave}, {w}"); A(f"s_cbranch_scc1 {labels[w]}")
    res = [a for a in accs]
    for w in range(4):
        if w: A.label(labels[w])
        for ai, acc in enumerate(accs):
            slot = 0
            for q in range(4):
                if q == w: continue
                for j in range(4):
                    A(f"ds_write_b128 {v(vT+1)}, {v(acc+16*q+4*j,4)} offset:{ai*12288 + slot*4096 + j*1024}")
                slot += 1
        A("s_waitcnt lgkmcnt(0)")
        A("s_barrier")
        for ai, acc in enumerate(accs):
            tmpq = [q for q in range(4) if q != w]
            k = 0
            for u in range(4):
                if u == w: continue
                slot = w if w < u else w - 1
                off = ai*12288 + slot*4096
                A(f"v_add_u32 {v(vT+2)}, {((u - w) * region) & 0xffffffff:#x}, {v(vT+1)}")
                for j in range(4):
                    A(f"ds_read_b128 {v(acc+16*tmpq[k]+4*j,4)}, {v(vT+2)} offset:{off + j*1024}")
                k += 1
            A("s_waitcnt lgkmcnt(0)")
            for j in range(0, 16, 2):
                A(f"v_pk_add_f32 {v(acc+16*tmpq[0]+j,2)}, {v(acc+16*tmpq[0]+j,2)}, {v(acc+16*tmpq[1]+j,2)}")
                A(f"v_pk_add_f32 {v(acc+16*tmpq[2]+j,2)}, {v(acc+16*tmpq[2]+j,2)}, {v(acc+16*w+j,2)}")
            for j in range(0, 16, 2):
                A(f"v_pk_add_f32 {v(acc+j,2)}, {v(acc+16*tmpq[0]+j,2)}, {v(acc+16*tmpq[2]+j,2)}")
        if w < 3: A(f"s_branch {end}")
    A.label(end)
    A.stamp(5)
    return res
```

```python
from common import *
from gemm_core import *

LDS_A = 131072 + 2048
def gen_A(stamp=False):
    A = Asm()
    N = "kA"
    A("s_cmp_ge_u32 s2, 256"); A(f"s_cbranch_scc1 {N}_done")
    A("s_load_dwordx4 s[4:7], s[0:1], 0")
    A("s_load_dwordx2 s[16:17], s[0:1], 32")
    A("s_load_dwordx2 s[18:19], s[0:1], 48")
    A("s_load_dwordx2 s[20:21], s[0:1], 72")
    A("s_load_dwordx2 s[22:23], s[0:1], 80")
    A("s_load_dwordx2 s[62:63], s[0:1], 40")
    A("s_memrealtime s[64:65]")
    A("s_and_b32 s24, s2, 7"); A("s_lshr_b32 s25, s2, 3")
    A("s_lshr_b32 s26, s24, 1"); A("s_lshl_b32 s26, s26, 2"); A("s_lshr_b32 s27, s25, 3"); A("s_add_u32 s26, s26, s27")
    A("s_and_b32 s27, s24, 1"); A("s_lshl_b32 s27, s27, 3"); A("s_and_b32 s28, s25, 7"); A("s_add_u32 s27, s27, s28")
    A("v_lshrrev_b32 v1, 6, v0"); A("v_and_b32 v2, 63, v0"); A("v_readfirstlane_b32 s33, v1")
    A("s_mov_b32 s37, 0")
    A("s_cmp_lt_u32 s27, 12")
    A("s_movk_i32 s34, 1024"); A("s_cselect_b32 s34, 3072, s34")
    A("s_mov_b32 s14, 0x80000"); A("s_cselect_b32 s14, 0x180000, s14")
    A("s_cselect_b32 s35, 0, 12"); A("s_sub_u32 s35, s27, s35"); A("s_lshl_b32 s35, s35, 8")
    A("s_waitcnt lgkmcnt(0)")
    A("s_cmp_lt_u32 s27, 12")
    A("s_cselect_b32 s12, s6, s16"); A("s_cselect_b32 s13, s7, s17"); A("s_mov_b32 s15, 0x20000")
    srd(A, 8, 4, 0x200000)
    A("s_cmp_lt_u32 s33, 4"); A(f"s_cbranch_scc1 {N}_compute")
    A("s_sub_u32 s38, s33, 4")
    loader_setup(A, 'row', 8, 9, 10, 4, "s34")
    A("s_lshl_b32 s40, s26, 7"); A("s_lshl_b32 s41, s38, 5"); A("s_add_u32 s40, s40, s41"); A("s_lshl_b32 s40, s40, 10")
    A("s_lshl_b32 s41, s38, 4"); A("s_mul_i32 s41, s41, s34"); A("s_add_u32 s41, s41, s35")
    A("s_lshl_b32 s42, s34, 2"); A("s_lshl_b32 s43, s34, 6")
    A("s_lshl_b32 s44, s38, 12"); A("s_lshl_b32 s45, s38, 12")
    loader_loop(A, 'row', "s[8:11]", "s[12:15]", 8, 9, 10, "s40", "s41", "128", "s43", "s42", "s44", "s45", "s46", "s37", "s47", "s48")
    A("s_endpgm")
    A.label(f"{N}_compute")
    srd(A, 28, 22, WS_SIZE)
    A.stamp(0)
    A("v_lshlrev_b32 v3, 2, v2")
    A("s_or_b32 s64, s64, 1")
    A("s_cmp_eq_u32 s33, 1"); A(f"s_cbranch_scc1 {N}_w1")
    l0 = A.uid(N); l1 = A.uid(N)
    A("s_cmp_lg_u32 s33, 0"); A(f"s_cbranch_scc1 {l1}")
    A("v_mov_b32 v4, s64"); A("s_mov_b64 s[48:49], exec"); A("s_mov_b64 exec, 1")
    A("s_cmp_lg_u32 s27, 0"); A(f"s_cbranch_scc1 {l0}")
    A("s_lshl_b32 s46, s26, 2"); A("v_mov_b32 v5, s46"); A("global_store_dword v5, v4, s[20:21] sc0 sc1")
    A.label(l0)
    l0b = A.uid(N)
    A("s_cmp_lg_u32 s26, 0"); A(f"s_cbranch_scc1 {l0b}")
    A("s_lshl_b32 s46, s27, 2"); A("s_add_u32 s46, s46, 64"); A("v_mov_b32 v5, s46"); A("global_store_dword v5, v4, s[20:21] sc0 sc1")
    A.label(l0b)
    A("s_mov_b64 exec, s[48:49]")
    A.label(l1)
    def poll_nonce():
        rt = A.uid(N); ok = A.uid(N)
        A("s_mov_b32 s46, 0x20000")
        A("s_add_u32 s47, s27, 16")
        A.label(rt)
        A("global_load_dword v49, v3, s[20:21] sc0 sc1")
        A("s_waitcnt vmcnt(0)")
        A("v_readlane_b32 s58, v49, s26"); A("v_readlane_b32 s59, v49, s47")
        A("s_nop 3")
        A("s_cmp_eq_u32 s58, 0"); A("s_cselect_b32 s50, 1, 0"); A("s_cmp_eq_u32 s59, 0"); A("s_cselect_b32 s50, 1, s50")
        A("s_cmp_eq_u32 s50, 0"); A(f"s_cbranch_scc1 {ok}")
        A("s_sub_u32 s46, s46, 1"); A("s_cmp_eq_u32 s46, 0"); A(f"s_cbranch_scc0 {rt}")
        A.label(ok)
    A("s_cmp_ge_u32 s33, 2"); A(f"s_cbranch_scc1 {N}_xstat")
    A("s_lshl_b32 s47, s26, 5"); A("s_mul_i32 s47, s47, s34"); A("s_add_u32 s47, s47, s35")
    colsum_partial(A, "s[12:15]", "s47", "s34", 3, 64, None, None, None)
    A("v_mov_b32 v4, 0x3f80"); A("v_mov_b32 v5, 0x3f800000")
    poll_nonce()
    colsum_reduce(A, 64, 4, 5, 100)
    A("v_mov_b32 v102, s59"); A("v_mov_b32 v103, s59")
    A("s_lshl_b32 s47, s27, 4"); A("s_add_u32 s47, s47, s26"); A("s_lshl_b32 s47, s47, 10"); A(f"s_add_u32 s47, s47, {WS_CSA:#x}")
    A("v_lshlrev_b32 v6, 4, v2")
    A("buffer_store_dwordx4 v[100:103], v6, s[28:31], s47 offen sc0 sc1")
    A("v_mov_b32 v4, s58"); A("v_mov_b32 v5, s59"); A("v_mov_b32 v6, 132096"); A("ds_write_b64 v6, v[4:5]")
    A(f"s_branch {N}_svc_done")
    A.label(f"{N}_w1")
    srd(A, 52, 6, 0x180000); srd(A, 56, 16, 0x80000)
    A("s_lshr_b32 s40, s24, 1"); A("s_lshl_b32 s40, s40, 9"); A("s_lshl_b32 s41, s25, 4"); A("s_add_u32 s40, s40, s41"); A("s_lshl_b32 s40, s40, 10")
    A("v_and_b32 v4, 15, v2"); A("v_lshrrev_b32 v5, 4, v2"); A("v_lshlrev_b32 v6, 10, v4"); A("v_lshl_add_u32 v6, v5, 7, v6")
    lh = A.uid(N); le = A.uid(N)
    A("s_and_b32 s41, s24, 1"); A("s_cmp_eq_u32 s41, 1"); A(f"s_cbranch_scc1 {lh}")
    A("v_mul_u32_u24 v7, 3072, v5"); A("v_lshl_add_u32 v7, v4, 7, v7")
    A("s_lshl_b32 s41, s25, 2"); A("s_mul_i32 s41, s41, 3072")
    for k, p in enumerate((('W', 0), ('X', 0), ('W', 1), ('W', 2), ('X', 1), ('W', 3))):
        if p[0] == 'W':
            A(f"s_add_u32 s42, s41, {p[1]*128*3072}"); A(f"buffer_load_dword {v(184+k)}, v7, s[52:55], s42 offen")
        else:
            A(f"buffer_load_dword {v(184+k)}, v6, s[8:11], s40 offen offset:{p[1]*512}")
    A(f"s_branch {le}")
    A.label(lh)
    A("v_lshrrev_b32 v5, 3, v2"); A("v_and_b32 v4, 7, v2"); A("v_lshlrev_b32 v4, 7, v4")
    A("v_mul_u32_u24 v7, 3072, v5"); A("v_add_u32 v7, v7, v4"); A("v_lshl_add_u32 v5, v5, 10, v4")
    A("s_lshl_b32 s41, s25, 3"); A("s_mul_i32 s43, s41, 3072"); A("s_add_u32 s43, s43, 2048"); A("s_lshl_b32 s41, s41, 10")
    for k, p in enumerate((('V', 0), ('H', 0), ('X', 0), ('V', 1), ('H', 1), ('X', 1))):
        if p[0] == 'V':
            A(f"s_add_u32 s42, s43, {p[1]*256*3072}"); A(f"buffer_load_dword {v(184+k)}, v7, s[52:55], s42 offen")
        elif p[0] == 'H':
            A(f"s_add_u32 s42, s41, {p[1]*256*1024}"); A(f"buffer_load_dword {v(184+k)}, v5, s[56:59], s42 offen")
        else:
            A(f"buffer_load_dword {v(184+k)}, v6, s[8:11], s40 offen offset:{p[1]*512}")
    A.label(le)
    srd(A, 40, 18, 0x1C0000)
    A("s_movk_i32 s44, 3584"); A("s_lshl_b32 s45, s27, 8"); A("s_lshl_b32 s47, s26, 5"); A("s_mul_i32 s47, s47, s44"); A("s_add_u32 s47, s47, s45")
    colsum_partial(A, "s[40:43]", "s47", "s44", 3, 152, None, None, None)
    A(f"s_branch {N}_svc_done")
    A.label(f"{N}_xstat")
    A("s_lshl_b32 s51, s26, 7"); A("s_lshl_b32 s46, s27, 3"); A("s_add_u32 s51, s51, s46")
    A("s_sub_u32 s46, s33, 2"); A("s_lshl_b32 s46, s46, 2"); A("s_add_u32 s51, s51, s46")
    A("s_lshl_b32 s46, s51, 10")
    A("v_lshlrev_b32 v6, 4, v2")
    for j in range(4):
        A(f"buffer_load_dwordx4 {v(64+4*j,4)}, v6, s[8:11], s46 offen offset:{j*1024}")
    A("v_mov_b32 v4, 0x3f803f80")
    for j in range(8): A(f"v_mov_b32 {v(96+j)}, 0")
    poll_nonce()
    for q in range(4):
        for j in range(4):
            A(f"v_dot2_f32_bf16 {v(96+j)}, {v(64+4*j+q)}, v4, {v(96+j)}")
            A(f"v_dot2_f32_bf16 {v(100+j)}, {v(64+4*j+q)}, {v(64+4*j+q)}, {v(100+j)}")
    A("s_nop 2")
    wave_reduce_lane63(A, list(range(96, 104)))
    A(f"v_mov_b32 v5, {hexf(EPS)}")
    for j in range(4): A(f"v_mul_f32 {v(104+4*j)}, {hexf(1/512)}, {v(96+j)}")
    for j in range(4): A(f"v_mul_f32 {v(120+j)}, {hexf(1/512)}, {v(100+j)}")
    for j in range(4): A(f"v_fma_f32 {v(120+j)}, -{v(104+4*j)}, {v(104+4*j)}, {v(120+j)}")
    for j in range(4): A(f"v_max_f32 {v(120+j)}, 0, {v(120+j)}")
    for j in range(4): A(f"v_add_f32 {v(105+4*j)}, v5, {v(120+j)}")
    for j in range(4): A(f"v_rsq_f32 {v(105+4*j)}, {v(105+4*j)}")
    for j in range(4): A(f"v_mul_f32 {v(106+4*j)}, {v(105+4*j)}, {v(105+4*j)}")
    for j in range(4): A(f"v_fma_f32 {v(106+4*j)}, {v(106+4*j)}, {v(120+j)}, v5")
    for j in range(4): A(f"v_rsq_f32 {v(106+4*j)}, {v(106+4*j)}")
    for j in range(4): A(f"v_mov_b32 {v(107+4*j)}, s58")
    for j in range(4): A(f"v_mul_f32 {v(106+4*j)}, {v(106+4*j)}, {v(105+4*j)}")
    A("s_lshl_b32 s46, s51, 4"); A(f"s_add_u32 s46, s46, {WS_ST:#x}")
    A("v_mov_b32 v6, 0")
    A("s_mov_b64 s[48:49], exec"); A("s_mov_b32 exec_lo, 0"); A("s_mov_b32 exec_hi, 0x80000000")
    for j in range(4):
        A(f"buffer_store_dwordx4 {v(104+4*j,4)}, v6, s[28:31], s46 offen offset:{16*j} sc0 sc1")
    A("s_mov_b64 exec, s[48:49]")
    A.label(f"{N}_svc_done")
    A("s_lshr_b32 s38, s33, 1"); A("s_and_b32 s39, s33, 1")
    compute_setup(A, 'row', "s38", "s39", 8, 12, 4)
    A("s_mov_b32 s60, 0")
    A("s_waitcnt lgkmcnt(0)")
    def issue_cons():
        A("v_and_b32 v50, 31, v2"); A("v_lshlrev_b32 v50, 4, v50")
        A("s_lshl_b32 s46, s26, 7"); A("s_lshl_b32 s47, s38, 6"); A("s_add_u32 s46, s46, s47"); A("s_lshl_b32 s46, s46, 4"); A(f"s_add_u32 s46, s46, {WS_ST:#x}")
        A("buffer_load_dwordx4 v[128:131], v50, s[28:31], s46 offen sc0 sc1")
        A("buffer_load_dwordx4 v[132:135], v50, s[28:31], s46 offen offset:512 sc0 sc1")
        A("v_lshrrev_b32 v51, 5, v2"); A("v_lshl_add_u32 v51, v51, 10, v50")
        A("s_lshl_b32 s46, s27, 14"); A("s_lshl_b32 s47, s39, 9"); A("s_add_u32 s46, s46, s47"); A(f"s_add_u32 s46, s46, {WS_CSA:#x}")
        for j in range(8):
            A(f"buffer_load_dwordx4 {v(192+4*j,4)}, v51, s[28:31], s46 offen offset:{(j%2)*2048} sc0 sc1")
            if j % 2 == 1 and j < 7: A("s_add_u32 s46, s46, 4096")
    def check_cons(fail_label):
        A("s_waitcnt vmcnt(0)")
        A("v_xor_b32 v52, s58, v131"); A("v_xor_b32 v53, s58, v135"); A("v_or_b32 v52, v52, v53")
        for j in range(8):
            A(f"v_xor_b32 v53, s59, {v(192+4*j+2)}"); A("v_or_b32 v52, v52, v53")
        A("v_cmp_ne_u32 vcc, 0, v52")
        A(f"s_cbranch_vccnz {fail_label}")
    def hook(ch, ks):
        if ch == 0 and ks == 3:
            A("v_mov_b32 v52, 132096"); A("ds_read_b64 v[54:55], v52"); A("s_waitcnt lgkmcnt(0)")
            A("v_readfirstlane_b32 s58, v54"); A("v_readfirstlane_b32 s59, v55")
        if ch == 1 and ks == 3:
            l = A.uid(N)
            A("s_cmp_lg_u32 s33, 2"); A(f"s_cbranch_scc1 {l}")
            srd(A, 52, 62, 0x80000)
            A("v_lshrrev_b32 v52, 3, v2"); A("v_and_b32 v53, 7, v2"); A("v_lshlrev_b32 v53, 7, v53"); A("v_lshl_add_u32 v52, v52, 10, v53")
            A("s_lshl_b32 s46, s25, 14")
            A("buffer_load_dword v190, v52, s[52:55], s46 offen"); A("s_add_u32 s46, s46, 8192")
            A("buffer_load_dword v191, v52, s[52:55], s46 offen")
            A.label(l)
        if ch == 2 and ks == 3: issue_cons()
        if ch in (3, 4, 5, 6) and ks == 3:
            l = A.uid(N); f = A.uid(N)
            A("s_cmp_lg_u32 s60, 0"); A(f"s_cbranch_scc1 {l}")
            check_cons(f)
            A("s_mov_b32 s60, 1"); A(f"s_branch {l}")
            A.label(f)
            issue_cons()
            A.label(l)
    compute_loop(A, 'row', 64, 8, 12, 16, 32, hook=hook)
    A.stamp(6)
    l = A.uid(N); f = A.uid(N); rt = A.uid(N)
    A("s_cmp_lg_u32 s60, 0"); A(f"s_cbranch_scc1 {l}")
    A("s_mov_b32 s61, 0x20000")
    A.label(rt)
    check_cons(f)
    A(f"s_branch {l}")
    A.label(f)
    A("s_sub_u32 s61, s61, 1"); A("s_cmp_eq_u32 s61, 0"); A(f"s_cbranch_scc1 {l}")
    issue_cons()
    A(f"s_branch {rt}")
    A.label(l)
    A.stamp(7)
    for j in range(0, 8, 2):
        A(f"v_add_f32 {v(192+4*j)}, {v(192+4*j)}, {v(192+4*j+4)}"); A(f"v_add_f32 {v(192+4*j+1)}, {v(192+4*j+1)}, {v(192+4*j+5)}")
    A("v_add_f32 v192, v192, v200"); A("v_add_f32 v193, v193, v201"); A("v_add_f32 v208, v208, v216"); A("v_add_f32 v209, v209, v217")
    A("v_add_f32 v192, v192, v208"); A("v_add_f32 v193, v193, v209")
    A("v_mov_b32 v194, v192"); A("v_mov_b32 v195, v193"); A("s_nop 1")
    A("v_permlane32_swap_b32 v192, v194"); A("v_permlane32_swap_b32 v193, v195"); A("s_nop 1")
    A("v_add_f32 v192, v192, v194"); A("v_add_f32 v193, v193, v195")
    A("s_lshl_b32 s46, s33, 8"); A("s_add_u32 s46, s46, 131072")
    A("v_and_b32 v50, 31, v2"); A("v_lshlrev_b32 v50, 3, v50"); A("v_add_u32 v50, s46, v50")
    A("ds_write_b64 v50, v[192:193]")
    A("v_lshrrev_b32 v51, 5, v2"); A("v_lshlrev_b32 v51, 4, v51"); A("v_add_u32 v51, s46, v51")
    A("s_waitcnt lgkmcnt(0)")
    for cb in range(2):
        for g in range(4):
            A(f"ds_read_b128 {v(16+16*cb+4*g,4)}, v51 offset:{cb*128+g*32}")
    A("s_lshr_b32 s50, s27, 2"); A("s_and_b32 s51, s27, 3")
    A(f"s_mov_b32 s52, {hexf(1.0)}"); A("s_cmp_eq_u32 s50, 0"); A(f"s_cselect_b32 s52, {hexf(QSCALE)}, s52")
    def w3_finish():
        l = A.uid(N)
        A("s_cmp_lg_u32 s33, 1"); A(f"s_cbranch_scc1 {l}")
        A("v_mov_b32 v4, 0x3f80"); A("v_mov_b32 v5, 0x3f800000")
        colsum_reduce(A, 152, 4, 5, 8)
        A("s_lshl_b32 s47, s27, 4"); A("s_add_u32 s47, s47, s26"); A("s_lshl_b32 s47, s47, 9"); A(f"s_add_u32 s47, s47, {WS_CS3:#x}")
        A("v_lshlrev_b32 v6, 3, v2")
        A("buffer_store_dwordx2 v[8:9], v6, s[28:31], s47 offen")
        A.label(l)
    A("s_cmp_eq_u32 s50, 3"); A(f"s_cbranch_scc1 {N}_epi_h")
    for b in range(2):
        A(f"v_mul_f32 {v(52+2*b)}, s52, {v(129+4*b)}")
    for b in range(2):
        A(f"v_mul_f32_e64 {v(53+2*b)}, -{v(128+4*b)}, {v(52+2*b)}")
    def apply_ln():
        for b in range(2):
            for cb in range(2):
                for j in range(8):
                    A(f"v_pk_mul_f32 {v(56+2*(j%4),2)}, {v(16+16*cb+2*j,2)}, {v(52+2*b,2)} op_sel:[0,1] op_sel_hi:[1,1]")
                    a = 64 + 16*(2*b+cb) + 2*j
                    A(f"v_pk_fma_f32 {v(a,2)}, {v(a,2)}, {v(52+2*b,2)}, {v(56+2*(j%4),2)} op_sel_hi:[1,0,1]")
    A("s_waitcnt lgkmcnt(0)")
    apply_ln()
    A("v_lshlrev_b32 v50, 4, v2")
    l = A.uid(N)
    A("s_cmp_lg_u32 s50, 2"); A(f"s_cbranch_scc1 {l}")
    A("v_bfe_u32 v4, v2, 2, 3"); A("v_lshlrev_b32 v4, 3, v4"); A("v_lshrrev_b32 v5, 5, v2"); A("v_lshl_add_u32 v4, v5, 2, v4")
    A("v_and_b32 v5, 3, v2"); A("v_add_u32 v4, v4, v5"); A("v_lshlrev_b32 v50, 4, v4")
    A.label(l)
    A("s_lshl_b32 s46, s50, 21")
    A("s_lshl_b32 s47, s51, 3"); A("s_lshl_b32 s53, s39, 2"); A("s_add_u32 s47, s47, s53"); A("s_lshl_b32 s47, s47, 16"); A("s_add_u32 s46, s46, s47")
    A("s_lshl_b32 s47, s26, 2"); A("s_lshl_b32 s53, s38, 1"); A("s_add_u32 s47, s47, s53"); A("s_lshl_b32 s47, s47, 10"); A("s_add_u32 s46, s46, s47")
    for b in range(2):
        for cb in range(2):
            a = 64 + 16*(2*b+cb)
            for half in range(2):
                d = 136 + 8*((2*b+cb) % 2) + 4*half
                for j in range(4):
                    A(f"v_cvt_pk_bf16_f32 {v(d+j)}, {v(a+8*half+2*j)}, {v(a+8*half+2*j+1)}")
                A(f"s_add_u32 s47, s46, {(2*cb+half)*65536 + b*1024}")
                A(f"buffer_store_dwordx4 {v(d,4)}, v50, s[28:31], s47 offen")
    w3_finish()
    A("s_endpgm")
    A.label(f"{N}_epi_h")
    A("s_and_b32 s53, s51, 1"); A("s_lshr_b32 s54, s51, 1"); A("s_add_u32 s54, s54, 1")
    A("s_sub_u32 s55, 0, s54"); A("s_cmp_eq_u32 s53, 0"); A("s_cselect_b32 s54, s54, s55")
    A("s_lshl_b32 s46, s26, 7"); A("s_lshl_b32 s47, s38, 6"); A("s_add_u32 s46, s46, s47"); A("s_add_u32 s46, s46, s54")
    A("v_and_b32 v4, 31, v2"); A("v_lshrrev_b32 v5, 5, v2"); A("v_lshlrev_b32 v5, 9, v5")
    for b in range(2):
        A(f"v_add_u32 {v(6)}, s46, v4")
        if b: A(f"v_add_u32 {v(6)}, 32, {v(6)}")
        A(f"v_mov_b32 {v(7)}, 0x800")
        A(f"v_cmp_lt_u32 vcc, {v(6)}, {v(7)}")
        A(f"v_mul_f32 {v(52+2*b)}, 1.0, {v(130+4*b)}")
        A(f"v_mul_f32_e64 {v(53+2*b)}, -{v(128+4*b)}, {v(130+4*b)}")
        A(f"v_cndmask_b32 {v(52+2*b)}, 0, {v(52+2*b)}, vcc")
        A(f"v_cndmask_b32 {v(53+2*b)}, 0, {v(53+2*b)}, vcc")
        A(f"v_and_b32 {v(6)}, 0x7ff, {v(6)}")
        A(f"v_lshrrev_b32 {v(7)}, 5, {v(6)}"); A(f"v_lshlrev_b32 {v(7)}, 15, {v(7)}")
        A(f"v_and_b32 {v(6)}, 31, {v(6)}"); A(f"v_lshl_add_u32 {v(6)}, {v(6)}, 4, {v(7)}")
        A(f"v_add_u32 {v(14+b)}, {v(6)}, v5")
    A("s_waitcnt lgkmcnt(0)")
    apply_ln()
    A(f"v_mov_b32 v4, {hexf(GK2)}"); A(f"v_mov_b32 v5, {hexf(GK1)}"); A("v_mov_b32 v6, 1.0"); A("v_mov_b32 v7, 1.0")
    A("s_lshl_b32 s47, s51, 3"); A("s_lshl_b32 s53, s39, 2"); A("s_add_u32 s47, s47, s53"); A("s_lshl_b32 s47, s47, 10"); A(f"s_add_u32 s46, s47, {WS_HS:#x}")
    for b in range(2):
        for cb in range(2):
            a = 64 + 16*(2*b+cb)
            for half in range(2):
                gelu_regs(A, [a+8*half+2*j for j in range(4)], 16, 4, 6)
                d = 136 + 8*((2*b+cb) % 2) + 4*half
                for j in range(4):
                    A(f"v_cvt_pk_bf16_f32 {v(d+j)}, {v(a+8*half+2*j)}, {v(a+8*half+2*j+1)}")
                A(f"s_add_u32 s47, s46, {(2*cb+half)*1024}")
                A(f"buffer_store_dwordx4 {v(d,4)}, {v(14+b)}, s[28:31], s47 offen")
    w3_finish()
    A.label(f"{N}_done")
    A("s_endpgm")
    return A.text(), 224, LDS_A
```

```python
from common import *
from gemm64 import *

LDS_B = 49152 + 1024
NEGBIG = -1e30

def gen_B():
    A = Asm()
    N = "kB"
    A("s_cmp_ge_u32 s2, 768"); A(f"s_cbranch_scc1 {N}_done")
    A("s_load_dwordx2 s[4:5], s[0:1], 0")
    A("s_load_dwordx2 s[6:7], s[0:1], 40")
    A("s_load_dwordx2 s[22:23], s[0:1], 80")
    A("s_load_dwordx2 s[16:17], s[0:1], 48")
    A("v_lshrrev_b32 v1, 6, v0"); A("v_and_b32 v2, 63, v0"); A("v_readfirstlane_b32 s33, v1")
    A("s_cmp_lt_u32 s2, 512"); A(f"s_cbranch_scc1 {N}_attn")
    A("s_sub_u32 s25, s2, 512"); A("s_and_b32 s24, s25, 7"); A("s_lshr_b32 s25, s25, 3")
    A("s_lshr_b32 s26, s25, 3"); A("s_lshl_b32 s27, s24, 2"); A("s_add_u32 s26, s26, s27")
    A("s_and_b32 s27, s25, 7")
    A("s_mul_i32 s34, s33, 12288")
    A("s_lshl_b32 s35, s33, 3")
    A("s_waitcnt lgkmcnt(0)")
    srd(A, 8, 4, 0x200000); srd(A, 12, 6, 0x80000); srd(A, 28, 22, WS_SIZE)
    ACC = 64; VX = 16; VWF = 128; VT = 4
    def pre():
        A("s_lshr_b32 s40, s33, 1"); A("s_and_b32 s41, s33, 1")
        A("s_lshl_b32 s42, s26, 6"); A("s_lshl_b32 s43, s40, 5"); A("s_add_u32 s42, s42, s43")
        A("s_lshl_b32 s43, s27, 6"); A("s_lshl_b32 s44, s41, 5"); A("s_add_u32 s43, s43, s44")
        A("v_and_b32 v12, 31, v2"); A("v_lshrrev_b32 v13, 5, v2")
        A("v_lshlrev_b32 v14, 10, v12"); A("v_lshl_add_u32 v14, v13, 3, v14")
        A("s_lshl_b32 s44, s42, 10"); A("s_lshl_b32 s45, s43, 1"); A("s_add_u32 s44, s44, s45")
        for g in range(4):
            A(f"buffer_load_dwordx2 {v(144+2*g,2)}, v14, s[8:11], s44 offen offset:{g*16}")
        A("v_lshlrev_b32 v15, 4, v12")
        A("s_lshl_b32 s45, s42, 4"); A(f"s_add_u32 s45, s45, {WS_ST:#x}")
        A("buffer_load_dwordx2 v[152:153], v15, s[28:31], s45 offen")
        return 5
    gemm64(A, [Seg(WS_HS, 32, "s35", 8, "s[12:15]", 1024, 'perm', ACC)], 6, "s[28:31]", "s26", "s27", "s33", "s34", 2, VX, VWF, VT, 50, pre_hook=pre)
    A("s_nop 15")
    reduce_scatter(A, [ACC], "s33", "s34", 12288, 2, VT)
    A("s_waitcnt vmcnt(0)")
    A("v_mul_f32_e64 v154, -v152, v153")
    A("v_mov_b32 v155, v154"); A("v_mov_b32 v152, v153")
    for g in range(4):
        for p_ in range(2):
            src = 144 + 2*g + p_
            A(f"v_lshlrev_b32 v16, 16, {v(src)}"); A(f"v_and_b32 v17, 0xffff0000, {v(src)}")
            a = ACC + 4*g + 2*p_
            A(f"v_pk_fma_f32 {v(a,2)}, v[16:17], v[152:153], {v(a,2)}")
            A(f"v_pk_add_f32 {v(a,2)}, {v(a,2)}, v[154:155]")
    A(f"v_pk_add_f32 v[18:19], {v(ACC,2)}, {v(ACC+2,2)}")
    A(f"v_pk_mul_f32 v[20:21], {v(ACC,2)}, {v(ACC,2)}")
    A(f"v_pk_fma_f32 v[20:21], {v(ACC+2,2)}, {v(ACC+2,2)}, v[20:21]")
    for j in range(4, 16, 2):
        A(f"v_pk_add_f32 v[18:19], v[18:19], {v(ACC+j,2)}")
        A(f"v_pk_fma_f32 v[20:21], {v(ACC+j,2)}, {v(ACC+j,2)}, v[20:21]")
    A("v_add_f32 v18, v18, v19"); A("v_add_f32 v19, v20, v21")
    A("v_mov_b32 v20, v18"); A("v_mov_b32 v21, v19"); A("s_nop 1")
    A("v_permlane32_swap_b32 v18, v20"); A("v_permlane32_swap_b32 v19, v21"); A("s_nop 1")
    A("v_add_f32 v18, v18, v20"); A("v_add_f32 v19, v19, v21")
    for j in range(8): A(f"v_cvt_pk_bf16_f32 {v(24+j)}, {v(ACC+2*j)}, {v(ACC+2*j+1)}")
    A("s_lshl_b32 s44, s26, 1"); A("s_add_u32 s44, s44, s40"); A("s_lshl_b32 s44, s44, 5")
    A("s_lshl_b32 s45, s27, 2"); A("s_add_u32 s44, s44, s45"); A("s_lshl_b32 s45, s41, 1"); A("s_add_u32 s44, s44, s45")
    A("s_lshl_b32 s44, s44, 10"); A(f"s_add_u32 s44, s44, {WS_X1:#x}")
    A("v_lshlrev_b32 v22, 4, v2")
    A("buffer_store_dwordx4 v[24:27], v22, s[28:31], s44 offen")
    A("buffer_store_dwordx4 v[28:31], v22, s[28:31], s44 offen offset:1024")
    A("s_lshl_b32 s44, s42, 7"); A("s_lshl_b32 s45, s27, 1"); A("s_add_u32 s45, s45, s41"); A("s_lshl_b32 s45, s45, 3"); A("s_add_u32 s44, s44, s45"); A(f"s_add_u32 s44, s44, {WS_ST1:#x}")
    A("v_lshlrev_b32 v23, 7, v12")
    A("s_mov_b32 exec_hi, 0")
    A("buffer_store_dwordx2 v[18:19], v23, s[28:31], s44 offen")
    A("s_endpgm")
    A.label(f"{N}_attn")
    A("s_and_b32 s24, s2, 7"); A("s_lshr_b32 s25, s2, 3")
    A("s_lshr_b32 s26, s25, 2"); A("s_sub_u32 s26, 15, s26")
    A("s_and_b32 s27, s25, 3"); A("s_lshl_b32 s28, s24, 2"); A("s_add_u32 s27, s27, s28")
    A("s_lshl_b32 s34, s26, 2"); A("s_add_u32 s35, s34, s33")
    A("s_waitcnt lgkmcnt(0)")
    A("s_lshl_b32 s36, s27, 16")
    A("s_add_u32 s8, s22, s36"); A("s_addc_u32 s9, s23, 0"); A(f"s_add_u32 s8, s8, {WS_K:#x}"); A("s_addc_u32 s9, s9, 0"); A("s_mov_b32 s10, 0x10000"); A("s_mov_b32 s11, 0x20000")
    A("s_add_u32 s12, s22, s36"); A("s_addc_u32 s13, s23, 0"); A(f"s_add_u32 s12, s12, {WS_V:#x}"); A("s_addc_u32 s13, s13, 0"); A("s_mov_b32 s14, 0x10000"); A("s_mov_b32 s15, 0x20000")
    srd(A, 28, 22, WS_SIZE)
    A("v_lshlrev_b32 v3, 4, v2")
    A("s_mul_i32 s37, s33, 3"); A("s_add_u32 s38, s34, s37"); A("s_sub_u32 s38, s38, 8"); A("s_lshl_b32 s38, s38, 10")
    A("s_lshl_b32 s37, s37, 10")
    A("s_mov_b32 s39, 0")
    for j in range(3):
        A(f"s_add_u32 s40, s38, {j*1024}")
        A("v_add_u32 v4, s40, v3")
        A(f"s_add_u32 m0, s37, {j*1024}"); A("s_nop 0")
        A(f"buffer_load_dwordx4 v4, s[8:11], s39 offen lds")
        A(f"s_add_u32 m0, s37, {j*1024 + 12288}"); A("s_nop 0")
        A(f"buffer_load_dwordx4 v4, s[12:15], s39 offen lds")
    VQ = 8
    A("s_lshl_b32 s40, s35, 10"); A("s_add_u32 s40, s40, s36"); A(f"s_add_u32 s40, s40, {WS_Q:#x}")
    A(f"buffer_load_dwordx4 {v(VQ,4)}, v3, s[28:31], s40 offen")
    A("v_mov_b32 v5, 0x3f803f80"); A("v_lshlrev_b32 v6, 2, v0"); A("ds_write_b32 v6, v5 offset:24576")
    VKA, VVA, VST = 6, 7, 12
    A("v_lshrrev_b32 v13, 5, v2"); A("v_lshlrev_b32 v14, 7, v13")
    A("v_bfe_u32 v15, v2, 1, 1"); A("v_lshl_add_u32 v14, v15, 6, v14")
    A("v_bfe_u32 v15, v2, 2, 2"); A("v_lshl_add_u32 v14, v15, 4, v14")
    A("v_and_b32 v15, 1, v2"); A("v_lshl_add_u32 v14, v15, 3, v14")
    A("v_add_u32 v14, 12288, v14")
    A("v_lshlrev_b32 v13, 7, v13"); A("v_xor_b32 v13, 128, v13"); A("v_add_u32 v13, 24576, v13")
    A("v_bfe_u32 v15, v2, 4, 1"); A("v_cmp_eq_u32 s[44:45], 0, v15")
    A("v_mov_b32 v15, 1024")
    A(f"v_cndmask_b32 {v(VST)}, 0, v15, s[44:45]")
    A("s_sub_u32 s46, 8, s34"); A("s_cmp_ge_u32 s26, 2"); A("s_cselect_b32 s46, s33, s46"); A("s_lshl_b32 s46, s46, 10")
    A("v_add_u32 v14, s46, v14")
    A(f"v_cndmask_b32 {v(VVA)}, v13, v14, s[44:45]")
    A(f"v_add_u32 {v(VKA)}, s46, v3")
    KF = [16, 20]; SB = [32, 48]; M0, M8, NM, PP, VF, O, MX = 64, 80, 96, 112, [120, 128], 136, 24
    A("v_and_b32 v13, 31, v2"); A("v_lshrrev_b32 v14, 5, v2"); A("v_lshlrev_b32 v14, 2, v14"); A("v_sub_u32 v13, v13, v14")
    A(f"v_mov_b32 v14, {hexf(NEGBIG)}")
    for r0 in (0, 8):
        for r in range(r0, r0 + 8):
            A(f"v_cmp_gt_i32 s[{48+2*(r-r0)}:{49+2*(r-r0)}], {8*(r//4) + r%4}, v13")
        for r in range(r0, r0 + 8):
            A(f"v_cndmask_b32 {v(M0+r)}, v14, 0, s[{48+2*(r-r0)}:{49+2*(r-r0)}]")
            A(f"v_cndmask_b32 {v(M8+r)}, 0, v14, s[{48+2*(r-r0)}:{49+2*(r-r0)}]")
    A.stamp(1)
    A("s_waitcnt vmcnt(0) lgkmcnt(0)")
    A("s_barrier")
    A.stamp(2)
    srd(A, 48, 16, 0x1C0000)
    A("v_mov_b32 v25, 14"); A("v_cmp_ge_u32 vcc, v2, v25"); A("s_nop 1"); A("v_cndmask_b32 v26, 0, 1, vcc")
    A("v_mul_u32_u24 v27, 14, v26"); A("v_sub_u32 v27, v2, v27"); A("v_lshlrev_b32 v27, 7, v27")
    A("v_mul_u32_u24 v26, 3584, v26"); A("v_add_u32 v27, v27, v26")
    A("s_lshl_b32 s52, s25, 3"); A("s_lshl_b32 s53, s33, 1"); A("s_add_u32 s52, s52, s53"); A("s_mul_i32 s52, s52, 3584")
    A("s_and_b32 s53, s24, 1"); A("s_mul_i32 s53, s53, 1792"); A("s_add_u32 s52, s52, s53")
    A("s_mov_b32 exec_lo, 0x0fffffff"); A("s_mov_b32 exec_hi, 0")
    A("buffer_load_dword v153, v27, s[48:51], s52 offen")
    A("s_mov_b64 exec, -1")
    def ninstr(i0): return sum(1 for x in A.L[i0:] if x.startswith("    ") and not x.strip().startswith(";"))
    def pad(i0, need):
        n = ninstr(i0)
        if n < need: A(f"s_nop {need - n - 1}")
    def rdK(f, off): A(f"ds_read_b128 {v(f,4)}, {v(VKA)} offset:{off}")
    def rdV(f):
        for u in range(2):
            for e2 in range(2):
                A(f"ds_read_b64_tr_b16 {v(f+4*u+2*e2,2)}, {v(VVA)} offset:{(4*u+2*e2)*128}")
    def qk(S, kf, C):
        A(f"v_mfma_f32_32x32x16_bf16 {v(S,16)}, {v(kf,4)}, {v(VQ,4)}, {C}")
        return len(A.L)
    def maxred(S, first):
        for i in range(8):
            if first and i == 0: A(f"v_max_f32 {v(MX)}, {v(S)}, {v(S+1)}")
            else: A(f"v_max3_f32 {v(MX)}, {v(S+2*i)}, {v(S+2*i+1)}, {v(MX)}")
    def finish_max():
        A(f"v_mov_b32 v25, {v(MX)}"); A("s_nop 1")
        A(f"v_permlane32_swap_b32 {v(MX)}, v25"); A("s_nop 1")
        A(f"v_max_f32 {v(MX)}, {v(MX)}, v25")
        A(f"v_sub_f32 {v(NM)}, 0, {v(MX)}")
        for r in range(1, 16): A(f"v_mov_b32 {v(NM+r)}, {v(NM)}")
    def expcvt(S):
        for i in range(0, 16, 4):
            for k in range(4): A(f"v_exp_f32 {v(S+i+k)}, {v(S+i+k)}")
            if i == 12: A("s_nop 0")
            if i > 0:
                A(f"v_cvt_pk_bf16_f32 {v(PP+(i-4)//2)}, {v(S+i-4)}, {v(S+i-3)}"); A(f"v_cvt_pk_bf16_f32 {v(PP+(i-4)//2+1)}, {v(S+i-2)}, {v(S+i-1)}")
        A(f"v_cvt_pk_bf16_f32 {v(PP+6)}, {v(S+12)}, {v(S+13)}"); A(f"v_cvt_pk_bf16_f32 {v(PP+7)}, {v(S+14)}, {v(S+15)}")
    def pv(vf, first):
        A("s_nop 1")
        A(f"v_mfma_f32_32x32x16_bf16 {v(O,16)}, {v(vf,4)}, {v(PP,4)}, {'0' if first else v(O,16)}")
        A(f"v_mfma_f32_32x32x16_bf16 {v(O,16)}, {v(vf+4,4)}, {v(PP+4,4)}, {v(O,16)}")
        return len(A.L)
    A("s_cmp_lt_u32 s26, 2"); A(f"s_cbranch_scc1 {N}_slow")
    Cof = lambda j, a, b, c: (v(a,16) if j == 0 else v(c,16) if j == 8 else b)
    rdK(KF[0], 0); rdK(KF[1], 1024)
    A("s_waitcnt lgkmcnt(1)")
    mk = [None]*9
    mk[0] = qk(SB[0], KF[0], Cof(0, M0, "0", M8))
    for j in range(9):
        if j + 1 <= 8:
            A("s_waitcnt lgkmcnt(0)")
            mk[j+1] = qk(SB[(j+1)%2], KF[(j+1)%2], Cof(j+1, M0, "0", M8))
            if j + 2 <= 8: rdK(KF[j%2], (j+2)*1024)
        pad(mk[j], 12)
        maxred(SB[j%2], j == 0)
    A.stamp(3)
    finish_max()
    for r in range(16):
        A(f"v_sub_f32 {v(M0+r)}, {v(M0+r)}, {v(MX)}"); A(f"v_sub_f32 {v(M8+r)}, {v(M8+r)}, {v(MX)}")
    rdK(KF[0], 0); rdK(KF[1], 1024); rdV(VF[0])
    A("s_waitcnt lgkmcnt(5)")
    mk[0] = qk(SB[0], KF[0], Cof(0, M0, v(NM,16), M8))
    for j in range(9):
        if j + 1 <= 8:
            A("s_waitcnt lgkmcnt(4)")
            mk[j+1] = qk(SB[(j+1)%2], KF[(j+1)%2], Cof(j+1, M0, v(NM,16), M8))
            if j + 2 <= 8: rdK(KF[j%2], (j+2)*1024)
            A(f"v_add_u32 {v(VVA)}, {v(VVA)}, {v(VST)}")
            rdV(VF[(j+1)%2])
        pad(mk[j], 12)
        expcvt(SB[j%2])
        newer = (1 if j + 2 <= 8 else 0) + (4 if j + 1 <= 8 else 0)
        A(f"s_waitcnt lgkmcnt({newer})")
        last = pv(VF[j%2], j == 0)
    A(f"s_branch {N}_fin")
    A.label(f"{N}_slow")
    A(f"v_mov_b32 {v(MX)}, v14")
    A(f"v_mov_b32 v26, {v(VKA)}")
    A("s_mov_b32 s47, s35")
    lp, ex = A.uid(N), A.uid(N)
    A.label(lp)
    A("s_cmp_eq_u32 s47, 0"); A(f"s_cbranch_scc1 {ex}")
    A(f"ds_read_b128 {v(KF[0],4)}, v26"); A("s_waitcnt lgkmcnt(0)")
    qk(SB[0], KF[0], "0"); A("s_nop 15")
    maxred(SB[0], False)
    A("v_add_u32 v26, 1024, v26"); A("s_sub_u32 s47, s47, 1"); A(f"s_branch {lp}")
    A.label(ex)
    A(f"ds_read_b128 {v(KF[0],4)}, v26"); A("s_waitcnt lgkmcnt(0)")
    qk(SB[0], KF[0], v(M8,16)); A("s_nop 15")
    maxred(SB[0], False)
    finish_max()
    for r in range(16): A(f"v_sub_f32 {v(M8+r)}, {v(M8+r)}, {v(MX)}")
    for r in range(16): A(f"v_mov_b32 {v(O+r)}, 0")
    A("s_mov_b32 s47, s35")
    lp, ex = A.uid(N), A.uid(N)
    def slow_blk(C):
        A(f"ds_read_b128 {v(KF[0],4)}, {v(VKA)}"); rdV(VF[0]); A("s_waitcnt lgkmcnt(0)")
        qk(SB[0], KF[0], C); A("s_nop 15")
        expcvt(SB[0])
        pv(VF[0], False)
    A.label(lp)
    A("s_cmp_eq_u32 s47, 0"); A(f"s_cbranch_scc1 {ex}")
    slow_blk(v(NM,16))
    A(f"v_add_u32 {v(VKA)}, 1024, {v(VKA)}"); A(f"v_add_u32 {v(VVA)}, {v(VVA)}, {v(VST)}")
    A("s_sub_u32 s47, s47, 1"); A(f"s_branch {lp}")
    A.label(ex)
    slow_blk(v(M8,16))
    A.label(f"{N}_fin")
    A.stamp(4)
    A("s_nop 15")
    A(f"v_rcp_f32 v25, {v(O+8)}"); A("s_nop 0")
    for r in range(8): A(f"v_mul_f32 {v(O+r)}, {v(O+r)}, v25")
    for j in range(4): A(f"v_cvt_pk_bf16_f32 {v(28+j)}, {v(O+2*j)}, {v(O+2*j+1)}")
    A("s_lshl_b32 s40, s35, 5"); A("s_add_u32 s40, s40, s27"); A("s_lshl_b32 s40, s40, 10"); A(f"s_add_u32 s40, s40, {WS_O:#x}")
    A("buffer_store_dwordx4 v[28:31], v3, s[28:31], s40 offen")
    A.label(f"{N}_done")
    A("s_endpgm")
    return A.text(), 160, LDS_B
```

```python
from common import *
from gemm_core import *

LDS_C = 131072 + 2048
def gen_C():
    A = Asm()
    N = "kC"
    A("s_cmp_ge_u32 s2, 256"); A(f"s_cbranch_scc1 {N}_done")
    A("s_and_b32 s24, s2, 7"); A("s_lshr_b32 s25, s2, 3")
    A("s_load_dwordx2 s[18:19], s[0:1], 48")
    A("s_load_dwordx2 s[22:23], s[0:1], 80")
    A("s_load_dwordx2 s[4:5], s[0:1], 16")
    A("s_load_dwordx2 s[6:7], s[0:1], 56")
    A("s_mul_i32 s26, s25, 37"); A("s_lshr_b32 s26, s26, 8")
    A("s_mul_i32 s27, s26, 7"); A("s_sub_u32 s27, s25, s27")
    A("s_lshr_b32 s28, s24, 1"); A("s_lshl_b32 s28, s28, 2"); A("s_add_u32 s26, s26, s28")
    A("s_and_b32 s28, s24, 1"); A("s_mul_i32 s28, s28, 7"); A("s_add_u32 s27, s27, s28")
    A("v_lshrrev_b32 v1, 6, v0"); A("v_and_b32 v2, 63, v0"); A("v_readfirstlane_b32 s33, v1")
    A("s_mov_b32 s37, 0")
    A("s_movk_i32 s34, 3584"); A("s_lshl_b32 s35, s27, 8")
    A("s_waitcnt lgkmcnt(0)")
    srd(A, 12, 18, 0x1C0000); srd(A, 28, 22, WS_SIZE)
    A("s_cmp_ge_u32 s33, 4"); A(f"s_cbranch_scc1 {N}_loader")
    def pf_x1():
        A("s_lshr_b32 s50, s24, 1"); A("s_lshl_b32 s50, s50, 4"); A("s_lshr_b32 s51, s25, 1"); A("s_add_u32 s50, s50, s51")
        A("s_lshl_b32 s50, s50, 5"); A("s_and_b32 s51, s25, 1"); A("s_lshl_b32 s51, s51, 3"); A("s_add_u32 s50, s50, s51")
        A("s_lshl_b32 s50, s50, 10"); A(f"s_add_u32 s50, s50, {WS_X1:#x}")
        A("v_lshlrev_b32 v4, 7, v2")
        A("buffer_load_dword v140, v4, s[28:31], s50 offen")
        A("s_add_u32 s50, s50, 16384")
        A("buffer_load_dword v141, v4, s[28:31], s50 offen")
    def pf_w4():
        srd(A, 52, 6, 0x1C0000); srd(A, 56, 4, 0x80000)
        A("v_lshrrev_b32 v4, 2, v2"); A("v_and_b32 v5, 3, v2"); A("v_lshlrev_b32 v5, 7, v5"); A("v_lshl_add_u32 v4, v4, 10, v5")
        A("s_and_b32 s50, s24, 1"); A("s_lshl_b32 s50, s50, 9")
        A("s_lshl_b32 s51, s25, 14"); A("s_add_u32 s51, s51, s50")
        A("buffer_load_dword v142, v4, s[56:59], s51 offen")
        A("s_mul_i32 s51, s25, 57344"); A("s_add_u32 s51, s51, s50")
        for j in range(4):
            if j == 3: A("s_mov_b32 exec_hi, 0")
            A(f"buffer_load_dword {v(143+j)}, v4, s[52:55], s51 offen")
            A("s_add_u32 s51, s51, 16384")
        A("s_mov_b32 exec_hi, -1")
    l1 = A.uid(N)
    A("s_cmp_lg_u32 s33, 0"); A(f"s_cbranch_scc1 {l1}")
    pf_x1()
    A.label(l1)
    l2 = A.uid(N)
    A("s_cmp_lt_u32 s25, 28"); A(f"s_cbranch_scc1 {l2}")
    A("s_cmp_lg_u32 s33, 1"); A(f"s_cbranch_scc1 {N}_done")
    pf_w4()
    A(f"s_branch {N}_done")
    A.label(l2)
    A.stamp(0)
    A("s_lshr_b32 s38, s33, 1"); A("s_and_b32 s39, s33, 1")
    compute_setup(A, 'frag', "s38", "s39", 8, 12, 4)
    def chook(ch, ks):
        if ch == 1 and ks == 3:
            l3 = A.uid(N)
            A("s_cmp_lg_u32 s33, 1"); A(f"s_cbranch_scc1 {l3}")
            pf_w4()
            A.label(l3)
    compute_loop(A, 'frag', 64, 8, 12, 16, 32, hook=chook)
    A("v_and_b32 v4, 31, v2"); A("v_lshlrev_b32 v4, 3, v4"); A("s_lshl_b32 s46, s38, 9"); A("s_add_u32 s46, s46, 131072"); A("v_add_u32 v4, s46, v4")
    A("ds_read_b64 v[52:53], v4"); A("ds_read_b64 v[54:55], v4 offset:256")
    A("v_lshrrev_b32 v51, 5, v2"); A("v_lshlrev_b32 v51, 4, v51"); A("s_lshl_b32 s46, s39, 8"); A("s_add_u32 s46, s46, 132096"); A("v_add_u32 v51, s46, v51")
    for cb in range(2):
        for g in range(4):
            A(f"ds_read_b128 {v(16+16*cb+4*g,4)}, v51 offset:{cb*128+g*32}")
    A("s_waitcnt lgkmcnt(0)")
    for b in range(2):
        for cb in range(2):
            for j in range(8):
                A(f"v_pk_mul_f32 {v(56+2*(j%4),2)}, {v(16+16*cb+2*j,2)}, {v(52+2*b,2)} op_sel:[0,1] op_sel_hi:[1,1]")
                a = 64 + 16*(2*b+cb) + 2*j
                A(f"v_pk_fma_f32 {v(a,2)}, {v(a,2)}, {v(52+2*b,2)}, {v(56+2*(j%4),2)} op_sel_hi:[1,0,1]")
    A.stamp(6)
    A(f"v_mov_b32 v4, {hexf(GK2)}"); A(f"v_mov_b32 v5, {hexf(GK1)}"); A("v_mov_b32 v6, 1.0"); A("v_mov_b32 v7, 1.0")
    A("v_lshlrev_b32 v14, 4, v2")
    A("s_lshl_b32 s46, s26, 2"); A("s_lshl_b32 s47, s38, 1"); A("s_add_u32 s46, s46, s47"); A("s_mul_i32 s46, s46, 112")
    A("s_lshl_b32 s47, s27, 3"); A("s_add_u32 s46, s46, s47"); A("s_lshl_b32 s47, s39, 2"); A("s_add_u32 s46, s46, s47")
    A("s_lshl_b32 s46, s46, 10"); A(f"s_add_u32 s46, s46, {WS_U:#x}")
    for b in range(2):
        for cb in range(2):
            a = 64 + 16*(2*b+cb)
            for half in range(2):
                gelu_regs(A, [a+8*half+2*j for j in range(4)], 16, 4, 6)
                d = 128 + 8*((2*b+cb) % 2) + 4*half
                for j in range(4):
                    A(f"v_cvt_pk_bf16_f32 {v(d+j)}, {v(a+8*half+2*j)}, {v(a+8*half+2*j+1)}")
                A(f"s_add_u32 s47, s46, {(b*112 + 2*cb+half)*1024}")
                A(f"buffer_store_dwordx4 {v(d,4)}, v14, s[28:31], s47 offen")
    A("s_endpgm")
    A.label(f"{N}_loader")
    A("s_cmp_ge_u32 s25, 28"); A(f"s_cbranch_scc1 {N}_done")
    A("s_sub_u32 s38, s33, 4")
    loader_setup(A, 'frag', 8, 9, 10, 4, "s34")
    A("s_lshl_b32 s40, s26, 2"); A("s_add_u32 s40, s40, s38"); A("s_lshl_b32 s40, s40, 15"); A(f"s_add_u32 s40, s40, {WS_X1:#x}")
    A("s_lshl_b32 s41, s38, 4"); A("s_mul_i32 s41, s41, s34"); A("s_add_u32 s41, s41, s35")
    A("s_lshl_b32 s42, s34, 2"); A("s_lshl_b32 s43, s34, 6")
    A("s_lshl_b32 s44, s38, 12"); A("s_lshl_b32 s45, s38, 12")
    NS = 4 + 4
    def stats_issue():
        A("v_and_b32 v12, 31, v2"); A("v_lshrrev_b32 v13, 5, v2"); A("v_lshlrev_b32 v14, 7, v12"); A("v_lshl_add_u32 v14, v13, 6, v14")
        A("s_lshl_b32 s50, s26, 7"); A("s_lshl_b32 s51, s38, 5"); A("s_add_u32 s50, s50, s51"); A("s_lshl_b32 s50, s50, 7"); A(f"s_add_u32 s50, s50, {WS_ST1:#x}")
        for j in range(4): A(f"buffer_load_dwordx4 {v(16+4*j,4)}, v14, s[28:31], s50 offen offset:{16*j}")
        A("v_lshlrev_b32 v15, 2, v12"); A("v_lshl_add_u32 v15, v13, 12, v15")
        A("s_lshl_b32 s50, s27, 13"); A("s_lshl_b32 s51, s38, 7"); A("s_add_u32 s50, s50, s51"); A(f"s_add_u32 s50, s50, {WS_CS3:#x}")
        for j in range(8): A(f"buffer_load_dword {v(32+j)}, v15, s[28:31], s50 offen offset:{512*j}")
    NS = 12
    def stats_finish():
        A("v_pk_add_f32 v[16:17], v[16:17], v[18:19]"); A("v_pk_add_f32 v[20:21], v[20:21], v[22:23]")
        A("v_pk_add_f32 v[24:25], v[24:25], v[26:27]"); A("v_pk_add_f32 v[28:29], v[28:29], v[30:31]")
        A("v_pk_add_f32 v[16:17], v[16:17], v[20:21]"); A("v_pk_add_f32 v[24:25], v[24:25], v[28:29]")
        A("v_pk_add_f32 v[16:17], v[16:17], v[24:25]")
        for j in range(1, 8, 2): A(f"v_add_f32 {v(32+j-1)}, {v(32+j-1)}, {v(32+j)}")
        A("v_add_f32 v32, v32, v34"); A("v_add_f32 v36, v36, v38"); A("v_add_f32 v32, v32, v36")
        A("v_mov_b32 v18, v16"); A("v_mov_b32 v19, v17"); A("v_mov_b32 v33, v32"); A("s_nop 1")
        A("v_permlane32_swap_b32 v16, v18"); A("v_permlane32_swap_b32 v17, v19"); A("v_permlane32_swap_b32 v32, v33"); A("s_nop 1")
        A("v_add_f32 v16, v16, v18"); A("v_add_f32 v17, v17, v19"); A("v_add_f32 v32, v32, v33")
        A(f"v_mul_f32 v16, {hexf(1/512)}, v16"); A(f"v_mul_f32 v17, {hexf(1/512)}, v17")
        A("v_fma_f32 v17, -v16, v16, v17"); A("v_max_f32 v17, 0, v17"); A(f"v_add_f32 v17, {hexf(EPS)}, v17")
        A("v_rsq_f32 v20, v17"); A("s_nop 0")
        A("v_mul_f32_e64 v21, -v16, v20")
        A("v_lshlrev_b32 v22, 3, v12"); A("s_lshl_b32 s50, s38, 8"); A("s_add_u32 s50, s50, 131072"); A("v_add_u32 v22, s50, v22")
        A("v_lshlrev_b32 v23, 2, v12"); A("s_lshl_b32 s50, s38, 7"); A("s_add_u32 s50, s50, 132096"); A("v_add_u32 v23, s50, v23")
        A("s_mov_b32 exec_hi, 0")
        A("ds_write_b64 v22, v[20:21]"); A("ds_write_b32 v23, v32")
        A("s_mov_b32 exec_hi, -1")
        A("s_waitcnt lgkmcnt(0)")
    loader_loop_c(A, "s[28:31]", "s[12:15]", 8, 9, 10, "s40", "s41", "4096", "s43", "s42", "s44", "s45", "s46", "s37", "s47", "s48", NS, stats_issue, stats_finish)
    A.label(f"{N}_done")
    A("s_endpgm")
    return A.text(), 152, LDS_C

def loader_loop_c(A, srdX, srdW, vXe, vXo, vW, sXbase, sWbase, sXadv, sWadv, sWstep, sLdsX, sLdsW, stmp, sRot, sXoff, sWoff, NS, stats_issue, stats_finish, nchunk=8):
    xmode = 'frag'
    def issue(ch):
        A(f"s_mul_i32 {sXoff}, {sRot}, {sXadv}"); A(f"s_add_u32 {sXoff}, {sXoff}, {sXbase}")
        A(f"s_mul_i32 {sWoff}, {sRot}, {sWadv}"); A(f"s_add_u32 {sWoff}, {sWoff}, {sWbase}")
        loader_issue_chunk(A, xmode, ch % 4, srdX, srdW, vXe, vXo, vW, sXoff, sWoff, sWstep, sLdsX, sLdsW, stmp)
        if ch + 1 < nchunk:
            A(f"s_add_u32 {sRot}, {sRot}, 1"); A(f"s_and_b32 {sRot}, {sRot}, {nchunk-1}")
    A.stamp(0)
    issue(0); issue(1)
    stats_issue()
    A.stamp(1)
    A(f"s_waitcnt vmcnt({8 + NS})")
    A.stamp(2)
    A("s_barrier")
    A.stamp(3)
    issue(2); issue(3)
    issued = 4
    for ch in range(nchunk):
        if ch + 1 < nchunk:
            out = issued - (ch + 2)
            extra = NS if ch == 0 else 0
            A(f"s_waitcnt vmcnt({8*out + extra})")
        if ch in (0, 3, 4, 5, 6): A.stamp({0: 4, 3: 5, 4: 6, 5: 7, 6: 8}[ch])
        A("s_barrier")
        if issued < nchunk:
            issue(issued); issued += 1
            if issued == nchunk: stats_finish()
```

```python
from common import *
from gemm64 import *

LDS_D = 4 * 24576
PD = 5
def gen_D():
    A = Asm()
    N = "kD"
    A("s_cmp_ge_u32 s2, 256"); A(f"s_cbranch_scc1 {N}_done")
    A("s_load_dwordx2 s[4:5], s[0:1], 0")
    A("s_load_dwordx2 s[6:7], s[0:1], 16")
    A("s_load_dwordx2 s[16:17], s[0:1], 56")
    A("s_load_dwordx2 s[18:19], s[0:1], 64")
    A("s_load_dwordx2 s[22:23], s[0:1], 80")
    A("v_lshrrev_b32 v1, 6, v0"); A("v_and_b32 v2, 63, v0"); A("v_readfirstlane_b32 s33, v1")
    A("s_and_b32 s24, s2, 7"); A("s_lshr_b32 s25, s2, 3")
    A("s_lshr_b32 s26, s24, 1"); A("s_lshl_b32 s26, s26, 3"); A("s_lshr_b32 s27, s25, 2"); A("s_add_u32 s26, s26, s27")
    A("s_and_b32 s27, s24, 1"); A("s_lshl_b32 s27, s27, 2"); A("s_and_b32 s28, s25, 3"); A("s_add_u32 s27, s27, s28")
    A("s_mul_i32 s34, s33, 24576")
    A("s_mul_i32 s35, s33, 28")
    A("s_lshl_b32 s36, s33, 3")
    A("s_waitcnt lgkmcnt(0)")
    srd(A, 8, 4, 0x200000); srd(A, 12, 6, 0x80000); srd(A, 40, 16, 0x1C0000); srd(A, 44, 18, 0x200000); srd(A, 28, 22, WS_SIZE)
    A("s_cmp_eq_u32 s33, 4"); A(f"s_cbranch_scc1 {N}_pf")
    ACH, ACS, VX, VWF, VT = 128, 192, 16, 96, 4
    XR, X1R = 112, 120
    def pre():
        A("s_lshr_b32 s60, s33, 1"); A("s_and_b32 s61, s33, 1")
        A("s_lshl_b32 s62, s26, 6"); A("s_lshl_b32 s63, s60, 5"); A("s_add_u32 s62, s62, s63")
        A("s_lshl_b32 s63, s27, 6"); A("s_lshl_b32 s64, s61, 5"); A("s_add_u32 s63, s63, s64")
        A("v_and_b32 v12, 31, v2"); A("v_lshrrev_b32 v13, 5, v2")
        A("v_lshlrev_b32 v14, 10, v12"); A("v_lshl_add_u32 v14, v13, 3, v14")
        A("s_lshl_b32 s64, s62, 10"); A("s_lshl_b32 s65, s63, 1"); A("s_add_u32 s64, s64, s65")
        for g in range(4):
            A(f"buffer_load_dwordx2 {v(XR+2*g,2)}, v14, s[8:11], s64 offen offset:{g*16}")
        A("s_lshl_b32 s59, s26, 1"); A("s_add_u32 s59, s59, s60"); A("s_lshl_b32 s59, s59, 5")
        A("s_lshl_b32 s65, s27, 2"); A("s_add_u32 s59, s59, s65"); A("s_lshl_b32 s65, s61, 1"); A("s_add_u32 s59, s59, s65")
        A("s_lshl_b32 s59, s59, 10"); A(f"s_add_u32 s59, s59, {WS_X1:#x}")
        A(f"buffer_load_dwordx4 {v(X1R,4)}, v4, s[28:31], s59 offen")
        A(f"buffer_load_dwordx4 {v(X1R+4,4)}, v4, s[28:31], s59 offen offset:1024")
        return 6
    segs = [Seg(WS_O, 32, "s36", 8, "s[12:15]", 1024, 'nat', ACS), Seg(WS_U, 112, "s35", 28, "s[40:43]", 1024, 'perm', ACH)]
    gemm64(A, segs, PD, "s[28:31]", "s26", "s27", "s33", "s34", 2, VX, VWF, VT, 50, pre_hook=pre)
    A("s_nop 15")
    reduce_scatter(A, [ACH, ACS], "s33", "s34", 24576, 2, VT)
    A("s_waitcnt vmcnt(0)")
    A(f"v_mov_b32 v16, {hexf(-LOG2E)}"); A(f"v_mov_b32 v17, {hexf(-LOG2E)}"); A("v_mov_b32 v18, 1.0"); A("v_mov_b32 v19, 1.0")
    for j in range(8):
        A(f"v_lshlrev_b32 v20, 16, {v(X1R+j)}"); A(f"v_and_b32 v21, 0xffff0000, {v(X1R+j)}")
        A(f"v_pk_add_f32 {v(ACH+2*j,2)}, {v(ACH+2*j,2)}, v[20:21]")
    for j in range(8): A(f"v_pk_mul_f32 {v(32+2*j,2)}, {v(ACH+2*j,2)}, v[16:17]")
    for j in range(16): A(f"v_exp_f32 {v(32+j)}, {v(32+j)}")
    A("s_nop 0")
    for j in range(8): A(f"v_pk_add_f32 {v(32+2*j,2)}, {v(32+2*j,2)}, v[18:19]")
    for j in range(16): A(f"v_rcp_f32 {v(32+j)}, {v(32+j)}")
    A("s_nop 0")
    for j in range(8): A(f"v_pk_mul_f32 {v(ACH+2*j,2)}, {v(ACH+2*j,2)}, {v(32+2*j,2)}")
    for j in range(8):
        A(f"v_lshlrev_b32 v20, 16, {v(XR+j)}"); A(f"v_and_b32 v21, 0xffff0000, {v(XR+j)}")
        A(f"v_pk_fma_f32 {v(ACH+2*j,2)}, {v(ACH+2*j,2)}, {v(ACS+2*j,2)}, v[20:21]")
    for j in range(8): A(f"v_cvt_pk_bf16_f32 {v(48+j)}, {v(ACH+2*j)}, {v(ACH+2*j+1)}")
    for g in range(4):
        A(f"buffer_store_dwordx2 {v(48+2*g,2)}, v14, s[44:47], s64 offen offset:{g*16}")
    A("s_endpgm")
    A.label(f"{N}_pf")
    A("s_lshr_b32 s40, s24, 1"); A("s_lshl_b32 s40, s40, 4"); A("s_lshr_b32 s41, s25, 1"); A("s_add_u32 s40, s40, s41")
    A("s_and_b32 s41, s25, 1"); A("s_lshl_b32 s41, s41, 1")
    A("v_lshrrev_b32 v4, 5, v2"); A("v_add_u32 v4, s41, v4")
    A("v_bfe_u32 v5, v2, 3, 2")
    A("v_and_b32 v6, 7, v2"); A("v_lshlrev_b32 v6, 7, v6")
    A("v_lshlrev_b32 v7, 3, v4"); A("v_add_u32 v7, v7, v5"); A("v_lshl_add_u32 v7, v7, 10, v6")
    A("s_lshl_b32 s42, s40, 15"); A(f"s_add_u32 s42, s42, {WS_O:#x}")
    A("buffer_load_dword v10, v7, s[28:31], s42 offen")
    A("s_add_u32 s42, s42, 4096")
    A("buffer_load_dword v11, v7, s[28:31], s42 offen")
    A("v_mul_u32_u24 v7, 28, v4"); A("v_add_u32 v7, v7, v5"); A("v_lshl_add_u32 v7, v7, 10, v6")
    A("s_mul_i32 s42, s40, 112"); A("s_lshl_b32 s42, s42, 10"); A(f"s_add_u32 s42, s42, {WS_U:#x}")
    for tg in range(7):
        A(f"buffer_load_dword {v(12+tg)}, v7, s[28:31], s42 offen")
        A("s_add_u32 s42, s42, 4096")
    A.label(f"{N}_done")
    A("s_endpgm")
    return A.text(), 256, LDS_D
```

```python
from asmlib import *
import struct
def f2u(x): return struct.unpack("<I", struct.pack("<f", x))[0]
def hexf(x): return f"{f2u(x):#x}"

WS_Q   = 0x000000
WS_K   = 0x200000
WS_V   = 0x400000
WS_HS  = 0x600000
WS_X1  = 0x800000
WS_O   = 0xA00000
WS_U   = 0xC00000
WS_ST  = 0x1400000
WS_CSA = 0x1600000
WS_CS3 = 0x1440000
WS_ST1 = 0x1480000
WS_S   = 0x1500000
WS_DBG = 0x2000000
WS_SIZE = 0x10000000

LOG2E = 1.4426950408889634
QSCALE = 0.25 * LOG2E
GK1 = -2.0 * 0.7978845608028654 * LOG2E
GK2 = GK1 * 0.044715
EPS = 1e-5

def srd(A, base, ptr, size):
    A(f"s_mov_b32 s{base}, s{ptr}")
    A(f"s_mov_b32 s{base+1}, s{ptr+1}")
    A(f"s_mov_b32 s{base+2}, {size:#x}")
    A(f"s_mov_b32 s{base+3}, 0x20000")

def gelu_regs(A, regs, tmp, vKP, vONE):
    n = len(regs)
    P = [tmp + 2*i for i in range(n)]
    for i, x in enumerate(regs): A(f"v_pk_mul_f32 {v(P[i],2)}, {v(x,2)}, {v(x,2)}")
    for i, x in enumerate(regs): A(f"v_pk_fma_f32 {v(P[i],2)}, {v(P[i],2)}, {v(vKP,2)}, {v(vKP,2)} op_sel:[0,0,1] op_sel_hi:[1,0,1]")
    for i, x in enumerate(regs): A(f"v_pk_mul_f32 {v(P[i],2)}, {v(P[i],2)}, {v(x,2)}")
    for i, x in enumerate(regs):
        A(f"v_exp_f32 {v(P[i])}, {v(P[i])}"); A(f"v_exp_f32 {v(P[i]+1)}, {v(P[i]+1)}")
    if n == 1: A("s_nop 0")
    for i, x in enumerate(regs): A(f"v_pk_add_f32 {v(P[i],2)}, {v(P[i],2)}, {v(vONE,2)}")
    for i, x in enumerate(regs):
        A(f"v_rcp_f32 {v(P[i])}, {v(P[i])}"); A(f"v_rcp_f32 {v(P[i]+1)}, {v(P[i]+1)}")
    if n == 1: A("s_nop 0")
    for i, x in enumerate(regs): A(f"v_pk_mul_f32 {v(x,2)}, {v(x,2)}, {v(P[i],2)}")

def colsum_partial(A, srdname, sOff, sStride, vLane4, vbuf, vC10, vC01, vout):
    for j in range(32):
        A(f"buffer_load_dword {v(vbuf+j)}, {v(vLane4)}, {srdname}, {sOff} offen")
        if j < 31: A(f"s_add_u32 {sOff}, {sOff}, {sStride}")

def colsum_reduce(A, vbuf, vC10, vC01, vout):
    a = [vout, vout+1, vout+2, vout+3]
    for i in range(4): A(f"v_mov_b32 {v(a[i])}, 0")
    for j in range(32):
        A(f"v_dot2_f32_bf16 {v(a[(j%2)*2])}, {v(vbuf+j)}, {v(vC10)}, {v(a[(j%2)*2])}")
        A(f"v_dot2_f32_bf16 {v(a[(j%2)*2+1])}, {v(vbuf+j)}, {v(vC01)}, {v(a[(j%2)*2+1])}")
    A("s_nop 2")
    A(f"v_add_f32 {v(a[0])}, {v(a[0])}, {v(a[2])}")
    A(f"v_add_f32 {v(a[1])}, {v(a[1])}, {v(a[3])}")

def wave_reduce_lane63(A, regs):
    steps = ["row_shr:1 row_mask:0xf bank_mask:0xf", "row_shr:2 row_mask:0xf bank_mask:0xf", "row_shr:4 row_mask:0xf bank_mask:0xf",
             "row_shr:8 row_mask:0xf bank_mask:0xf", "row_bcast:15 row_mask:0xa bank_mask:0xf", "row_bcast:31 row_mask:0xc bank_mask:0xf"]
    for st in steps:
        for r in regs:
            A(f"v_add_f32_dpp {v(r)}, {v(r)}, {v(r)} {st}")
        if len(regs) < 3: A("s_nop 1")

OPTS = dict(codepf=True, wt="")
def code_prefetch(A, first_label, sI, vLane, vT, vDummy, sT):
    l = A.uid("cpf")
    A(f"s_getpc_b64 s[{sT}:{sT+1}]")
    A.label(l)
    A(f"s_sub_u32 s{sT}, s{sT}, {l}-{first_label}")
    A(f"s_subb_u32 s{sT+1}, s{sT+1}, 0")
    A(f"s_lshl_b32 s{sT+2}, {sI}, 13")
    A(f"v_lshlrev_b32 {v(vT)}, 7, {v(vLane)}")
    A(f"v_add_u32 {v(vT)}, s{sT+2}, {v(vT)}")
    A(f"v_mov_b32 {v(vT+1)}, text_end_marker-{first_label}")
    A(f"v_cmp_lt_u32 vcc, {v(vT)}, {v(vT+1)}")
    A(f"s_and_saveexec_b64 s[{sT+4}:{sT+5}], vcc")
    e = A.uid("cpf")
    A(f"s_cbranch_execz {e}")
    A(f"global_load_dword {v(vDummy)}, {v(vT)}, s[{sT}:{sT+1}]")
    A.label(e)
    A(f"s_mov_b64 exec, s[{sT+4}:{sT+5}]")

def colsum4_issue(A, srdname, sOff, sStride4, vOff, vbuf):
    for j in range(8):
        A(f"buffer_load_dwordx4 {v(vbuf+4*j,4)}, {v(vOff)}, {srdname}, {sOff} offen")
        if j < 7: A(f"s_add_u32 {sOff}, {sOff}, {sStride4}")

def colsum4_reduce(A, vbuf, vC10, vC01, acc, vLane, vT, sM):
    for i in range(8): A(f"v_mov_b32 {v(acc+i)}, 0")
    A(f"v_lshrrev_b32 {v(vT)}, 4, {v(vLane)}")
    for g in range(1, 4): A(f"v_cmp_eq_u32 s[{sM+2*(g-1)}:{sM+2*(g-1)+1}], {g}, {v(vT)}")
    for j in range(8):
        for q in range(4):
            A(f"v_dot2_f32_bf16 {v(acc+2*q)}, {v(vbuf+4*j+q)}, {v(vC10)}, {v(acc+2*q)}")
            A(f"v_dot2_f32_bf16 {v(acc+2*q+1)}, {v(vbuf+4*j+q)}, {v(vC01)}, {v(acc+2*q+1)}")
    A("s_nop 2")
    for sw in ("v_permlane16_swap_b32", "v_permlane32_swap_b32"):
        for i in range(8): A(f"v_mov_b32 {v(vT+i)}, {v(acc+i)}")
        for i in range(8): A(f"{sw} {v(acc+i)}, {v(vT+i)}")
        A("s_nop 0")
        for i in range(8): A(f"v_add_f32 {v(acc+i)}, {v(acc+i)}, {v(vT+i)}")
    for g in range(1, 4):
        A(f"v_cndmask_b32 {v(acc)}, {v(acc)}, {v(acc+2*g)}, s[{sM+2*(g-1)}:{sM+2*(g-1)+1}]")
        A(f"v_cndmask_b32 {v(acc+1)}, {v(acc+1)}, {v(acc+2*g+1)}, s[{sM+2*(g-1)}:{sM+2*(g-1)+1}]")
```

```python
from asmlib import *

STAGE = 32768
XOFF = 0
WOFF = 16384

def loader_setup(A, xmode, vXe, vXo, vW, vtmp, wstride):
    l = vtmp; t = vtmp + 1; t2 = vtmp + 2
    A(f"v_and_b32 {v(l)}, 63, v0")
    if xmode == 'row':
        A(f"v_lshrrev_b32 {v(t)}, 3, {v(l)}")
        A(f"v_lshlrev_b32 {v(t)}, 10, {v(t)}")
        A(f"v_lshrrev_b32 {v(t2)}, 4, {v(l)}")
        A(f"v_and_b32 {v(vXe)}, 7, {v(l)}")
        A(f"v_xor_b32 {v(vXe)}, {v(vXe)}, {v(t2)}")
        A(f"v_xor_b32 {v(vXo)}, 4, {v(vXe)}")
        A(f"v_lshl_add_u32 {v(vXe)}, {v(vXe)}, 4, {v(t)}")
        A(f"v_lshl_add_u32 {v(vXo)}, {v(vXo)}, 4, {v(t)}")
    else:
        A(f"v_lshlrev_b32 {v(vXe)}, 4, {v(l)}")
    A(f"v_lshrrev_b32 {v(t2)}, 4, {v(l)}")
    A(f"v_lshlrev_b32 {v(t)}, 2, {v(t2)}")
    A(f"v_and_b32 {v(vW)}, 15, {v(l)}")
    A(f"v_xor_b32 {v(vW)}, {v(vW)}, {v(t)}")
    A(f"v_lshlrev_b32 {v(vW)}, 4, {v(vW)}")
    A(f"v_mul_lo_u32 {v(t2)}, {v(t2)}, {wstride}")
    A(f"v_add_u32 {v(vW)}, {v(vW)}, {v(t2)}")

def loader_issue_chunk(A, xmode, stage, srdX, srdW, vXe, vXo, vW, sXoff, sWoff, sWstep, sLdsX, sLdsW, stmp):
    if xmode == 'row':
        for j in range(4):
            if j == 0:
                A(f"s_add_u32 m0, {sLdsX}, {stage*STAGE + XOFF}")
                A(f"s_mov_b32 {stmp}, {sXoff}")
            else:
                A(f"s_add_u32 m0, m0, 1024")
                A(f"s_add_u32 {stmp}, {stmp}, 8192")
            A(f"buffer_load_dwordx4 {v(vXe if j % 2 == 0 else vXo)}, {srdX}, {stmp} offen lds")
    else:
        A(f"s_add_u32 m0, {sLdsX}, {stage*STAGE + XOFF}")
        A("s_nop 0")
        for j in range(4):
            A(f"buffer_load_dwordx4 {v(vXe)}, {srdX}, {sXoff} offen offset:{j*1024} lds")
    for j in range(4):
        if j == 0:
            A(f"s_add_u32 m0, {sLdsW}, {stage*STAGE + WOFF}")
            A(f"s_mov_b32 {stmp}, {sWoff}")
        else:
            A(f"s_add_u32 m0, m0, 1024")
            A(f"s_add_u32 {stmp}, {stmp}, {sWstep}")
        A(f"buffer_load_dwordx4 {v(vW)}, {srdW}, {stmp} offen lds")

def compute_setup(A, xmode, sWr, sWc, vXa, vWa, vtmp):
    l = vtmp; t = vtmp + 1; t2 = vtmp + 2; t3 = vtmp + 3
    A(f"v_and_b32 {v(l)}, 63, v0")
    if xmode == 'row':
        A(f"v_and_b32 {v(t)}, 31, {v(l)}")
        A(f"v_lshrrev_b32 {v(t2)}, 5, {v(l)}")
        A(f"v_bfe_u32 {v(t3)}, {v(l)}, 1, 3")
        A(f"v_xor_b32 {v(t2)}, {v(t2)}, {v(t3)}")
        A(f"v_lshlrev_b32 {v(t)}, 7, {v(t)}")
        A(f"s_lshl_b32 s90, {sWr}, 13")
        A(f"v_add_u32 {v(t)}, s90, {v(t)}")
        for ks in range(4):
            A(f"v_xor_b32 {v(vXa+ks)}, {2*ks}, {v(t2)}")
            A(f"v_lshl_add_u32 {v(vXa+ks)}, {v(vXa+ks)}, 4, {v(t)}")
    else:
        A(f"v_lshlrev_b32 {v(t)}, 4, {v(l)}")
        A(f"s_lshl_b32 s90, {sWr}, 13")
        A(f"v_add_u32 {v(vXa)}, s90, {v(t)}")
    A(f"v_bfe_u32 {v(t)}, {v(l)}, 2, 2")
    A(f"v_lshrrev_b32 {v(t2)}, 5, {v(l)}")
    A(f"v_lshlrev_b32 {v(t2)}, {3 if xmode == 'row' else 2}, {v(t2)}")
    A(f"v_add_u32 {v(t2)}, {v(t2)}, {v(t)}")
    A(f"v_lshlrev_b32 {v(t2)}, 8, {v(t2)}")
    A(f"v_bfe_u32 {v(t3)}, {v(l)}, 4, 1")
    A(f"v_lshlrev_b32 {v(t3)}, 1, {v(t3)}")
    A(f"v_bfe_u32 {v(vWa)}, {v(l)}, 1, 1")
    A(f"v_add_u32 {v(t3)}, {v(t3)}, {v(vWa)}")
    A(f"s_lshl_b32 s90, {sWc}, 3")
    A(f"v_add_u32 {v(t3)}, s90, {v(t3)}")
    A(f"v_lshlrev_b32 {v(t)}, 2, {v(t)}")
    A(f"v_xor_b32 {v(t3)}, {v(t3)}, {v(t)}")
    A(f"v_xor_b32 {v(t)}, 4, {v(t3)}")
    A(f"v_and_b32 {v(l)}, 1, {v(l)}")
    A(f"v_lshl_add_u32 {v(t2)}, {v(l)}, 3, {v(t2)}")
    A(f"v_add_u32 {v(t2)}, {WOFF}, {v(t2)}")
    A(f"v_lshl_add_u32 {v(vWa)}, {v(t3)}, 4, {v(t2)}")
    A(f"v_lshl_add_u32 {v(vWa+1)}, {v(t)}, 4, {v(t2)}")

def frag_reads(A, xmode, ks, stage_off, vXa, vWa, fX, fW):
    for b in range(2):
        if xmode == 'row':
            A(f"ds_read_b128 {v(fX+4*b,4)}, {v(vXa+ks)} offset:{stage_off + b*4096}")
        else:
            A(f"ds_read_b128 {v(fX+4*b,4)}, {v(vXa)} offset:{stage_off + b*4096 + ks*1024}")
    estep = 4 if xmode == 'row' else 8
    for cb in range(2):
        for e2 in range(2):
            A(f"ds_read_b64_tr_b16 {v(fW+4*cb+2*e2,2)}, {v(vWa+cb)} offset:{stage_off + (16*ks + estep*e2)*256}")

def mfmas(A, acc, fX, fW, swap=False, first=False):
    for b in range(2):
        for cb in range(2):
            d = v(acc + 16*(2*b+cb), 16)
            c = "0" if first else d
            if not swap:
                A(f"v_mfma_f32_32x32x16_bf16 {d}, {v(fW+4*cb,4)}, {v(fX+4*b,4)}, {c}")
            else:
                A(f"v_mfma_f32_32x32x16_bf16 {d}, {v(fX+4*b,4)}, {v(fW+4*cb,4)}, {c}")


def frag_read_list(xmode, ks, stage_off, vXa, vWa, fX, fW):
    L = []
    estep = 4 if xmode == 'row' else 8
    def X(b):
        if xmode == 'row':
            return f"ds_read_b128 {v(fX+4*b,4)}, {v(vXa+ks)} offset:{stage_off + b*4096}"
        return f"ds_read_b128 {v(fX+4*b,4)}, {v(vXa)} offset:{stage_off + b*4096 + ks*1024}"
    def W(cb, e2):
        return f"ds_read_b64_tr_b16 {v(fW+4*cb+2*e2,2)}, {v(vWa+cb)} offset:{stage_off + (16*ks + estep*e2)*256}"
    return [W(0,0), W(0,1), X(0), X(1), W(1,0), W(1,1)]

def mfma_list(acc, fX, fW, swap=False, first=False):
    L = []
    for (b, cb) in ((0,0),(1,0),(0,1),(1,1)):
        d = v(acc + 16*(2*b+cb), 16)
        c = "0" if first else d
        if not swap: L.append(f"v_mfma_f32_32x32x16_bf16 {d}, {v(fW+4*cb,4)}, {v(fX+4*b,4)}, {c}")
        else: L.append(f"v_mfma_f32_32x32x16_bf16 {d}, {v(fX+4*b,4)}, {v(fW+4*cb,4)}, {c}")
    return L

def compute_loop(A, xmode, acc, vXa, vWa, f0, f1, swap=False, nchunk=8, hook=None):
    nx = 4 if xmode == 'row' else 1
    cur_hi = 0
    def set_hi(hi):
        nonlocal cur_hi
        if hi != cur_hi:
            d = (hi - cur_hi) * 65536
            for i in range(nx):
                A(f"v_add_u32 {v(vXa+i)}, {d & 0xffffffff:#x}, {v(vXa+i)}")
            for i in range(2):
                A(f"v_add_u32 {v(vWa+i)}, {d & 0xffffffff:#x}, {v(vWa+i)}")
            cur_hi = hi
    F = [f0, f1]
    A.stamp(1)
    A("s_barrier")
    A.stamp(2)
    for r in frag_read_list(xmode, 0, 0, vXa, vWa, F[0], F[0]+8): A(r)
    step = 0
    for ch in range(nchunk):
        for ks in range(4):
            cur = F[step % 2]; nxt = F[(step + 1) % 2]
            last = (ch == nchunk - 1 and ks == 3)
            M = mfma_list(acc, cur, cur + 8, swap, first=(step == 0))
            A("s_waitcnt lgkmcnt(0)")
            if ks < 3:
                R = frag_read_list(xmode, ks + 1, ((ch % 4) % 2) * 32768, vXa, vWa, nxt, nxt + 8)
                A(M[0]); A(R[0]); A(R[1]); A(M[1]); A(R[2]); A(R[3]); A(M[2]); A(R[4]); A(R[5]); A(M[3])
            else:
                A(M[0])
                A("s_barrier")
                if ch == 0: A.stamp(3)
                if ch == 3: A.stamp(4)
                if ch == 7: A.stamp(5)
                if not last:
                    st = (ch + 1) % 4
                    set_hi(st // 2)
                    R = frag_read_list(xmode, 0, (st % 2) * 32768, vXa, vWa, nxt, nxt + 8)
                    A(R[0]); A(R[1]); A(M[1]); A(R[2]); A(R[3]); A(M[2]); A(R[4]); A(R[5]); A(M[3])
                else:
                    A(M[1]); A(M[2]); A(M[3])
            if hook: hook(ch, ks)
            step += 1

def loader_loop(A, xmode, srdX, srdW, vXe, vXo, vW, sXbase, sWbase, sXadv, sWadv, sWstep, sLdsX, sLdsW, stmp, sRot, sXoff, sWoff,
                nchunk=8, hook=None, hook0=None, hook1=None):
    def issue(ch):
        A(f"s_mul_i32 {sXoff}, {sRot}, {sXadv}"); A(f"s_add_u32 {sXoff}, {sXoff}, {sXbase}")
        A(f"s_mul_i32 {sWoff}, {sRot}, {sWadv}"); A(f"s_add_u32 {sWoff}, {sWoff}, {sWbase}")
        loader_issue_chunk(A, xmode, ch % 4, srdX, srdW, vXe, vXo, vW, sXoff, sWoff, sWstep, sLdsX, sLdsW, stmp)
        if ch + 1 < nchunk:
            A(f"s_add_u32 {sRot}, {sRot}, 1"); A(f"s_and_b32 {sRot}, {sRot}, {nchunk-1}")
    import common
    npro = common.OPTS.get('npro', 2)
    A.stamp(0)
    for c_ in range(npro): issue(c_)
    A.stamp(1)
    if hook0: hook0()
    A(f"s_waitcnt vmcnt({8*(npro-1)})")
    A.stamp(2)
    A("s_barrier")
    A.stamp(3)
    if hook1: hook1()
    for c_ in range(npro, 4): issue(c_)
    issued = 4
    for ch in range(nchunk):
        if ch + 1 < nchunk:
            out = issued - (ch + 2)
            A(f"s_waitcnt vmcnt({8*out})")
        if ch in (0, 3, 4, 5, 6): A.stamp({0: 4, 3: 5, 4: 6, 5: 7, 6: 8}[ch])
        A("s_barrier")
        if issued < nchunk:
            issue(issued); issued += 1
        if hook: hook(ch)
```

```python
from common import *
from gemm_core import *

LDS_A = 131072 + 2048
def gen_A(stamp=False):
    A = Asm()
    N = "kA"
    A("s_cmp_ge_u32 s2, 256"); A(f"s_cbranch_scc1 {N}_done")
    A("s_load_dwordx4 s[4:7], s[0:1], 0")
    A("s_load_dwordx2 s[16:17], s[0:1], 32")
    A("s_load_dwordx2 s[18:19], s[0:1], 48")
    A("s_load_dwordx2 s[20:21], s[0:1], 72")
    A("s_load_dwordx2 s[22:23], s[0:1], 80")
    A("s_load_dwordx2 s[62:63], s[0:1], 40")
    A("s_memrealtime s[64:65]")
    A("s_and_b32 s24, s2, 7"); A("s_lshr_b32 s25, s2, 3")
    if OPTS['codepf']:
        lcp = A.uid(N)
        A("v_readfirstlane_b32 s46, v0"); A("s_nop 0"); A("s_cmp_lt_u32 s46, 448"); A(f"s_cbranch_scc1 {lcp}")
        A("v_and_b32 v2, 63, v0")
        code_prefetch(A, "kA_kernel", "s25", 2, 4, 20, 40)
        A.label(lcp)
    A("s_lshr_b32 s26, s24, 1"); A("s_lshl_b32 s26, s26, 2"); A("s_lshr_b32 s27, s25, 3"); A("s_add_u32 s26, s26, s27")
    A("s_and_b32 s27, s24, 1"); A("s_lshl_b32 s27, s27, 3"); A("s_and_b32 s28, s25, 7"); A("s_add_u32 s27, s27, s28")
    A("v_lshrrev_b32 v1, 6, v0"); A("v_and_b32 v2, 63, v0"); A("v_readfirstlane_b32 s33, v1")
    if OPTS.get('a_rot', 1) == 1:
        A("s_lshr_b32 s37, s25, 3"); A("s_lshl_b32 s37, s37, 1"); A("s_add_u32 s37, s37, s25"); A("s_and_b32 s37, s37, 7")
    elif OPTS.get('a_rot', 1) == 2:
        A("s_lshr_b32 s37, s25, 3"); A("s_add_u32 s37, s37, s25"); A("s_and_b32 s37, s37, 1"); A("s_lshl_b32 s37, s37, 2")
    else: A("s_mov_b32 s37, 0")
    A("s_cmp_lt_u32 s27, 12")
    A("s_movk_i32 s34, 1024"); A("s_cselect_b32 s34, 3072, s34")
    A("s_mov_b32 s14, 0x80000"); A("s_cselect_b32 s14, 0x180000, s14")
    A("s_cselect_b32 s35, 0, 12"); A("s_sub_u32 s35, s27, s35"); A("s_lshl_b32 s35, s35, 8")
    A("s_waitcnt lgkmcnt(0)")
    A("s_cmp_lt_u32 s27, 12")
    A("s_cselect_b32 s12, s6, s16"); A("s_cselect_b32 s13, s7, s17"); A("s_mov_b32 s15, 0x20000")
    srd(A, 8, 4, 0x200000)
    A("s_cmp_lt_u32 s33, 4"); A(f"s_cbranch_scc1 {N}_compute")
    A("s_sub_u32 s38, s33, 4")
    loader_setup(A, 'row', 8, 9, 10, 4, "s34")
    A("s_lshl_b32 s40, s26, 7"); A("s_lshl_b32 s41, s38, 5"); A("s_add_u32 s40, s40, s41"); A("s_lshl_b32 s40, s40, 10")
    A("s_lshl_b32 s41, s38, 4"); A("s_mul_i32 s41, s41, s34"); A("s_add_u32 s41, s41, s35")
    A("s_lshl_b32 s42, s34, 2"); A("s_lshl_b32 s43, s34, 6")
    A("s_lshl_b32 s44, s38, 12"); A("s_lshl_b32 s45, s38, 12")
    loader_loop(A, 'row', "s[8:11]", "s[12:15]", 8, 9, 10, "s40", "s41", "128", "s43", "s42", "s44", "s45", "s46", "s37", "s47", "s48")
    A("s_endpgm")
    A.label(f"{N}_compute")
    srd(A, 28, 22, WS_SIZE)
    A.stamp(0)
    A("v_lshlrev_b32 v3, 2, v2")
    A("s_or_b32 s64, s64, 1")
    l0 = A.uid(N); l1 = A.uid(N)
    A("s_cmp_lg_u32 s33, 0"); A(f"s_cbranch_scc1 {l1}")
    A("v_mov_b32 v4, s64"); A("s_mov_b64 s[48:49], exec"); A("s_mov_b64 exec, 1")
    A("s_cmp_lg_u32 s27, 0"); A(f"s_cbranch_scc1 {l0}")
    A("s_lshl_b32 s46, s26, 2"); A("v_mov_b32 v5, s46"); A("global_store_dword v5, v4, s[20:21] sc0 sc1")
    A.label(l0)
    l0b = A.uid(N)
    A("s_cmp_lg_u32 s26, 0"); A(f"s_cbranch_scc1 {l0b}")
    A("s_lshl_b32 s46, s27, 2"); A("s_add_u32 s46, s46, 64"); A("v_mov_b32 v5, s46"); A("global_store_dword v5, v4, s[20:21] sc0 sc1")
    A.label(l0b)
    A("s_mov_b64 exec, s[48:49]")
    A.label(l1)
    def nonce_check():
        rt = A.uid(N); ok = A.uid(N)
        A("s_mov_b32 s46, 0x20000")
        A("s_add_u32 s47, s27, 16")
        A.label(rt)
        A("v_readlane_b32 s58, v49, s26"); A("v_readlane_b32 s59, v49, s47")
        A("s_nop 3")
        A("s_cmp_eq_u32 s58, 0"); A("s_cselect_b32 s50, 1, 0"); A("s_cmp_eq_u32 s59, 0"); A("s_cselect_b32 s50, 1, s50")
        A("s_cmp_eq_u32 s50, 0"); A(f"s_cbranch_scc1 {ok}")
        A("s_sub_u32 s46, s46, 1"); A("s_cmp_eq_u32 s46, 0"); A(f"s_cbranch_scc1 {ok}")
        A("global_load_dword v49, v3, s[20:21] sc0 sc1"); A("s_waitcnt vmcnt(0)")
        A(f"s_branch {rt}")
        A.label(ok)
    SB = 152
    def service_issue():
        lx = A.uid(N); le = A.uid(N)
        A("s_cmp_eq_u32 s33, 1"); A(f"s_cbranch_scc1 {le}")
        A("s_cmp_ge_u32 s33, 2"); A(f"s_cbranch_scc1 {lx}")
        A("s_lshl_b32 s47, s26, 5"); A("s_mul_i32 s47, s47, s34"); A("s_add_u32 s47, s47, s35")
        A("v_lshrrev_b32 v6, 4, v2"); A("v_mul_lo_u32 v6, v6, s34"); A("v_and_b32 v7, 15, v2"); A("v_lshl_add_u32 v6, v7, 4, v6")
        A("s_lshl_b32 s46, s34, 2")
        colsum4_issue(A, "s[12:15]", "s47", "s46", 6, SB)
        A(f"s_branch {le}")
        A.label(lx)
        A("s_lshl_b32 s61, s26, 7"); A("s_lshl_b32 s46, s27, 3"); A("s_add_u32 s61, s61, s46")
        A("s_sub_u32 s46, s33, 2"); A("s_lshl_b32 s46, s46, 2"); A("s_add_u32 s61, s61, s46")
        A("s_lshl_b32 s46, s61, 10")
        A("v_lshlrev_b32 v6, 4, v2")
        for j in range(4):
            A(f"buffer_load_dwordx4 {v(SB+4*j,4)}, v6, s[8:11], s46 offen offset:{j*1024}")
        A.label(le)
    def w3_issue():
        le = A.uid(N)
        A("s_cmp_lg_u32 s33, 1"); A(f"s_cbranch_scc1 {le}")
        srd(A, 40, 18, 0x1C0000)
        A("s_movk_i32 s44, 3584"); A("s_lshl_b32 s45, s27, 8"); A("s_lshl_b32 s47, s26, 5"); A("s_mul_i32 s47, s47, s44"); A("s_add_u32 s47, s47, s45")
        A("v_lshrrev_b32 v48, 4, v2"); A("v_mul_u32_u24 v48, 3584, v48"); A("v_and_b32 v49, 15, v2"); A("v_lshl_add_u32 v48, v49, 4, v48")
        A("s_movk_i32 s44, 14336")
        colsum4_issue(A, "s[40:43]", "s47", "s44", 48, SB)
        A.label(le)
    A.label(f"{N}_w1")
    def service0_compute():
        le = A.uid(N)
        A("s_cmp_lg_u32 s33, 0"); A(f"s_cbranch_scc1 {le}")
        A("s_waitcnt vmcnt(0)")
        A("global_load_dword v49, v3, s[20:21] sc0 sc1")
        A("v_mov_b32 v4, 0x3f80"); A("v_mov_b32 v5, 0x3f800000")
        colsum4_reduce(A, SB, 4, 5, 184, 2, 192, 50)
        A("s_waitcnt vmcnt(0)")
        nonce_check()
        A("v_mov_b32 v4, s58"); A("v_mov_b32 v5, s59"); A("v_mov_b32 v6, 132096"); A("ds_write_b64 v6, v[4:5]")
        A("v_mov_b32 v186, s59"); A("v_mov_b32 v187, s59")
        A("s_lshl_b32 s47, s27, 4"); A("s_add_u32 s47, s47, s26"); A("s_lshl_b32 s47, s47, 10"); A(f"s_add_u32 s47, s47, {WS_CSA:#x}")
        A("v_and_b32 v6, 15, v2"); A("v_lshrrev_b32 v7, 4, v2"); A("v_lshl_add_u32 v6, v6, 2, v7"); A("v_lshlrev_b32 v6, 4, v6")
        A("buffer_store_dwordx4 v[184:187], v6, s[28:31], s47 offen sc0 sc1")
        A("s_waitcnt lgkmcnt(0)")
        A.label(le)
    def read_nonces():
        A("v_mov_b32 v52, 132096"); A("ds_read_b64 v[54:55], v52"); A("s_waitcnt lgkmcnt(0)")
        A("v_readfirstlane_b32 s58, v54"); A("v_readfirstlane_b32 s59, v55")
    def service23_compute():
        le = A.uid(N)
        A("s_cmp_lt_u32 s33, 2"); A(f"s_cbranch_scc1 {le}")
        A("s_waitcnt vmcnt(0)")
        S0, S1, O0, VR = 168, 172, 176, 192
        A("v_mov_b32 v4, 0x3f803f80")
        for j in range(8): A(f"v_mov_b32 {v(S0+j)}, 0")
        for q in range(4):
            for j in range(4):
                A(f"v_dot2_f32_bf16 {v(S0+j)}, {v(SB+4*j+q)}, v4, {v(S0+j)}")
                A(f"v_dot2_f32_bf16 {v(S1+j)}, {v(SB+4*j+q)}, {v(SB+4*j+q)}, {v(S1+j)}")
        A("s_nop 2")
        wave_reduce_lane63(A, list(range(S0, S0 + 8)))
        A(f"v_mov_b32 v5, {hexf(EPS)}")
        for j in range(4): A(f"v_mul_f32 {v(O0+4*j)}, {hexf(1/512)}, {v(S0+j)}")
        for j in range(4): A(f"v_mul_f32 {v(VR+j)}, {hexf(1/512)}, {v(S1+j)}")
        for j in range(4): A(f"v_fma_f32 {v(VR+j)}, -{v(O0+4*j)}, {v(O0+4*j)}, {v(VR+j)}")
        for j in range(4): A(f"v_max_f32 {v(VR+j)}, 0, {v(VR+j)}")
        for j in range(4): A(f"v_add_f32 {v(O0+1+4*j)}, v5, {v(VR+j)}")
        for j in range(4): A(f"v_rsq_f32 {v(O0+1+4*j)}, {v(O0+1+4*j)}")
        for j in range(4): A(f"v_mul_f32 {v(O0+2+4*j)}, {v(O0+1+4*j)}, {v(O0+1+4*j)}")
        for j in range(4): A(f"v_fma_f32 {v(O0+2+4*j)}, {v(O0+2+4*j)}, {v(VR+j)}, v5")
        for j in range(4): A(f"v_rsq_f32 {v(O0+2+4*j)}, {v(O0+2+4*j)}")
        A("s_nop 0")
        for j in range(4): A(f"v_mul_f32 {v(O0+2+4*j)}, {v(O0+2+4*j)}, {v(O0+1+4*j)}")
        A.label(le)
    def service23_store():
        O0 = 176
        le = A.uid(N)
        A("s_cmp_lt_u32 s33, 2"); A(f"s_cbranch_scc1 {le}")
        for j in range(4): A(f"v_mov_b32 {v(O0+3+4*j)}, s58")
        A("s_lshl_b32 s46, s61, 4"); A(f"s_add_u32 s46, s46, {WS_ST:#x}")
        A("v_mov_b32 v6, 0")
        A("s_mov_b64 s[48:49], exec"); A("s_mov_b32 exec_lo, 0"); A("s_mov_b32 exec_hi, 0x80000000")
        for j in range(4):
            A(f"buffer_store_dwordx4 {v(O0+4*j,4)}, v6, s[28:31], s46 offen offset:{16*j} sc0 sc1")
        A("s_mov_b64 exec, s[48:49]")
        A.label(le)
    service_issue()
    A("s_lshr_b32 s38, s33, 1"); A("s_and_b32 s39, s33, 1")
    compute_setup(A, 'row', "s38", "s39", 8, 12, 4)
    A("s_mov_b32 s60, 0")
    service0_compute(); service23_compute()
    def issue_cons():
        A("v_and_b32 v50, 31, v2"); A("v_lshlrev_b32 v50, 4, v50")
        A("s_lshl_b32 s46, s26, 7"); A("s_lshl_b32 s47, s38, 6"); A("s_add_u32 s46, s46, s47"); A("s_lshl_b32 s46, s46, 4"); A(f"s_add_u32 s46, s46, {WS_ST:#x}")
        A("buffer_load_dwordx4 v[128:131], v50, s[28:31], s46 offen sc0 sc1")
        A("buffer_load_dwordx4 v[132:135], v50, s[28:31], s46 offen offset:512 sc0 sc1")
        A("v_lshrrev_b32 v51, 5, v2"); A("v_lshl_add_u32 v51, v51, 10, v50")
        A("s_lshl_b32 s46, s27, 14"); A("s_lshl_b32 s47, s39, 9"); A("s_add_u32 s46, s46, s47"); A(f"s_add_u32 s46, s46, {WS_CSA:#x}")
        for j in range(8):
            A(f"buffer_load_dwordx4 {v(192+4*j,4)}, v51, s[28:31], s46 offen offset:{(j%2)*2048} sc0 sc1")
            if j % 2 == 1 and j < 7: A("s_add_u32 s46, s46, 4096")
    def check_cons(fail_label):
        A("s_waitcnt vmcnt(0)")
        A("v_xor_b32 v52, s58, v131"); A("v_xor_b32 v53, s58, v135"); A("v_or_b32 v52, v52, v53")
        for j in range(8):
            A(f"v_xor_b32 v53, s59, {v(192+4*j+2)}"); A("v_or_b32 v52, v52, v53")
        A("v_cmp_ne_u32 vcc, 0, v52")
        A(f"s_cbranch_vccnz {fail_label}")
    def hook(ch, ks):
        if ch == 0 and ks == 0:
            read_nonces(); service23_store()
        if ch == OPTS.get('a_w2ch', 99) and ks == 3:
            l = A.uid(N)
            A("s_cmp_lg_u32 s33, 2"); A(f"s_cbranch_scc1 {l}")
            srd(A, 52, 62, 0x80000)
            A("v_lshrrev_b32 v52, 3, v2"); A("v_and_b32 v53, 7, v2"); A("v_lshlrev_b32 v53, 7, v53"); A("v_lshl_add_u32 v52, v52, 10, v53")
            A("s_lshl_b32 s46, s25, 14")
            A("buffer_load_dword v190, v52, s[52:55], s46 offen"); A("s_add_u32 s46, s46, 8192")
            A("buffer_load_dword v191, v52, s[52:55], s46 offen")
            A.label(l)
        if ch == OPTS.get('a_ci', 3) and ks == 3: issue_cons()
        if ch > OPTS.get('a_ci', 3) and ch < 7 and ks == 3:
            l = A.uid(N); f = A.uid(N)
            A("s_cmp_lg_u32 s60, 0"); A(f"s_cbranch_scc1 {l}")
            check_cons(f)
            A("s_mov_b32 s60, 1"); A(f"s_branch {l}")
            A.label(f)
            issue_cons()
            A.label(l)
    compute_loop(A, 'row', 64, 8, 12, 16, 32, hook=hook)
    A.stamp(6)
    l = A.uid(N); f = A.uid(N); rt = A.uid(N)
    A("s_cmp_lg_u32 s60, 0"); A(f"s_cbranch_scc1 {l}")
    A("s_mov_b32 s61, 0x20000")
    A.label(rt)
    check_cons(f)
    A(f"s_branch {l}")
    A.label(f)
    A("s_sub_u32 s61, s61, 1"); A("s_cmp_eq_u32 s61, 0"); A(f"s_cbranch_scc1 {l}")
    issue_cons()
    A(f"s_branch {rt}")
    A.label(l)
    A.stamp(7)
    w3_issue()
    if OPTS.get('a_mall', True):
        lm = A.uid(N); l2 = A.uid(N); l3 = A.uid(N)
        A("s_cmp_ge_u32 s27, 12"); A(f"s_cbranch_scc1 {lm}")
        A("s_cmp_lt_u32 s33, 2"); A(f"s_cbranch_scc1 {lm}")
        A("s_mul_i32 s46, s26, 12"); A("s_add_u32 s46, s46, s27")
        A("v_lshlrev_b32 v48, 7, v2")
        A("s_cmp_eq_u32 s33, 2"); A(f"s_cbranch_scc1 {l2}")
        A("s_cmp_ge_u32 s46, 112"); A(f"s_cbranch_scc1 {lm}")
        A("s_load_dwordx2 s[40:41], s[0:1], 56"); A("s_waitcnt lgkmcnt(0)")
        A("s_mov_b32 s42, 0x1C0000"); A("s_mov_b32 s43, 0x20000")
        A("s_lshl_b32 s47, s46, 14")
        A("buffer_load_dword v190, v48, s[40:43], s47 offen"); A("s_add_u32 s47, s47, 8192")
        A("buffer_load_dword v191, v48, s[40:43], s47 offen")
        A(f"s_branch {lm}")
        A.label(l2)
        A("s_cmp_ge_u32 s46, 128"); A(f"s_cbranch_scc1 {lm}")
        A("s_load_dwordx2 s[40:41], s[0:1], 16"); A("s_waitcnt lgkmcnt(0)")
        A("s_cmp_lt_u32 s46, 64"); A("s_cselect_b32 s40, s40, s62"); A("s_cselect_b32 s41, s41, s63")
        A("s_mov_b32 s42, 0x80000"); A("s_mov_b32 s43, 0x20000")
        A("s_and_b32 s47, s46, 63"); A("s_lshl_b32 s47, s47, 13")
        A("buffer_load_dword v190, v48, s[40:43], s47 offen")
        A.label(lm)
    for j in range(0, 8, 2):
        A(f"v_add_f32 {v(192+4*j)}, {v(192+4*j)}, {v(192+4*j+4)}"); A(f"v_add_f32 {v(192+4*j+1)}, {v(192+4*j+1)}, {v(192+4*j+5)}")
    A("v_add_f32 v192, v192, v200"); A("v_add_f32 v193, v193, v201"); A("v_add_f32 v208, v208, v216"); A("v_add_f32 v209, v209, v217")
    A("v_add_f32 v192, v192, v208"); A("v_add_f32 v193, v193, v209")
    A("v_mov_b32 v194, v192"); A("v_mov_b32 v195, v193"); A("s_nop 1")
    A("v_permlane32_swap_b32 v192, v194"); A("v_permlane32_swap_b32 v193, v195"); A("s_nop 1")
    A("v_add_f32 v192, v192, v194"); A("v_add_f32 v193, v193, v195")
    A("s_lshl_b32 s46, s33, 8"); A("s_add_u32 s46, s46, 131072")
    A("v_and_b32 v50, 31, v2"); A("v_lshlrev_b32 v50, 3, v50"); A("v_add_u32 v50, s46, v50")
    A("ds_write_b64 v50, v[192:193]")
    A("v_lshrrev_b32 v51, 5, v2"); A("v_lshlrev_b32 v51, 4, v51"); A("v_add_u32 v51, s46, v51")
    A("s_waitcnt lgkmcnt(0)")
    for cb in range(2):
        for g in range(4):
            A(f"ds_read_b128 {v(16+16*cb+4*g,4)}, v51 offset:{cb*128+g*32}")
    A("s_lshr_b32 s50, s27, 2"); A("s_and_b32 s51, s27, 3")
    A(f"s_mov_b32 s52, {hexf(1.0)}"); A("s_cmp_eq_u32 s50, 0"); A(f"s_cselect_b32 s52, {hexf(QSCALE)}, s52")
    def w3_finish():
        l = A.uid(N)
        A("s_cmp_lg_u32 s33, 1"); A(f"s_cbranch_scc1 {l}")
        A("v_mov_b32 v4, 0x3f80"); A("v_mov_b32 v5, 0x3f800000")
        A("s_waitcnt vmcnt(8)")
        colsum4_reduce(A, 152, 4, 5, 184, 2, 192, 50)
        A("s_lshl_b32 s47, s27, 4"); A("s_add_u32 s47, s47, s26"); A("s_lshl_b32 s47, s47, 9"); A(f"s_add_u32 s47, s47, {WS_CS3:#x}")
        A("v_and_b32 v6, 15, v2"); A("v_lshrrev_b32 v7, 4, v2"); A("v_lshl_add_u32 v6, v6, 2, v7"); A("v_lshlrev_b32 v6, 3, v6")
        A(f"buffer_store_dwordx2 v[184:185], v6, s[28:31], s47 offen {OPTS['wt']}")
        A.label(l)
    A("s_cmp_eq_u32 s50, 3"); A(f"s_cbranch_scc1 {N}_epi_h")
    for b in range(2):
        A(f"v_mul_f32 {v(52+2*b)}, s52, {v(129+4*b)}")
    for b in range(2):
        A(f"v_mul_f32_e64 {v(53+2*b)}, -{v(128+4*b)}, {v(52+2*b)}")
    def apply_ln():
        for b in range(2):
            for cb in range(2):
                for j in range(8):
                    A(f"v_pk_mul_f32 {v(56+2*(j%4),2)}, {v(16+16*cb+2*j,2)}, {v(52+2*b,2)} op_sel:[0,1] op_sel_hi:[1,1]")
                    a = 64 + 16*(2*b+cb) + 2*j
                    A(f"v_pk_fma_f32 {v(a,2)}, {v(a,2)}, {v(52+2*b,2)}, {v(56+2*(j%4),2)} op_sel_hi:[1,0,1]")
    A("s_waitcnt lgkmcnt(0)")
    apply_ln()
    A("v_lshlrev_b32 v50, 4, v2")
    l = A.uid(N)
    A("s_cmp_lg_u32 s50, 2"); A(f"s_cbranch_scc1 {l}")
    A("v_bfe_u32 v4, v2, 2, 3"); A("v_lshlrev_b32 v4, 3, v4"); A("v_lshrrev_b32 v5, 5, v2"); A("v_lshl_add_u32 v4, v5, 2, v4")
    A("v_and_b32 v5, 3, v2"); A("v_add_u32 v4, v4, v5"); A("v_lshlrev_b32 v50, 4, v4")
    A.label(l)
    A("s_lshl_b32 s46, s50, 21")
    A("s_lshl_b32 s47, s51, 3"); A("s_lshl_b32 s53, s39, 2"); A("s_add_u32 s47, s47, s53"); A("s_lshl_b32 s47, s47, 16"); A("s_add_u32 s46, s46, s47")
    A("s_lshl_b32 s47, s26, 2"); A("s_lshl_b32 s53, s38, 1"); A("s_add_u32 s47, s47, s53"); A("s_lshl_b32 s47, s47, 10"); A("s_add_u32 s46, s46, s47")
    for b in range(2):
        for cb in range(2):
            a = 64 + 16*(2*b+cb)
            for half in range(2):
                d = 136 + 8*((2*b+cb) % 2) + 4*half
                for j in range(4):
                    A(f"v_cvt_pk_bf16_f32 {v(d+j)}, {v(a+8*half+2*j)}, {v(a+8*half+2*j+1)}")
                A(f"s_add_u32 s47, s46, {(2*cb+half)*65536 + b*1024}")
                A(f"buffer_store_dwordx4 {v(d,4)}, v50, s[28:31], s47 offen {OPTS['wt']}")
    w3_finish()
    A("s_endpgm")
    A.label(f"{N}_epi_h")
    A("s_and_b32 s53, s51, 1"); A("s_lshr_b32 s54, s51, 1"); A("s_add_u32 s54, s54, 1")
    A("s_sub_u32 s55, 0, s54"); A("s_cmp_eq_u32 s53, 0"); A("s_cselect_b32 s54, s54, s55")
    A("s_lshl_b32 s46, s26, 7"); A("s_lshl_b32 s47, s38, 6"); A("s_add_u32 s46, s46, s47"); A("s_add_u32 s46, s46, s54")
    A("v_and_b32 v4, 31, v2"); A("v_lshrrev_b32 v5, 5, v2"); A("v_lshlrev_b32 v5, 9, v5")
    for b in range(2):
        A(f"v_add_u32 {v(6)}, s46, v4")
        if b: A(f"v_add_u32 {v(6)}, 32, {v(6)}")
        A(f"v_mov_b32 {v(7)}, 0x800")
        A(f"v_cmp_lt_u32 vcc, {v(6)}, {v(7)}")
        A(f"v_mul_f32 {v(52+2*b)}, 1.0, {v(130+4*b)}")
        A(f"v_mul_f32_e64 {v(53+2*b)}, -{v(128+4*b)}, {v(130+4*b)}")
        A(f"v_cndmask_b32 {v(52+2*b)}, 0, {v(52+2*b)}, vcc")
        A(f"v_cndmask_b32 {v(53+2*b)}, 0, {v(53+2*b)}, vcc")
        A(f"v_and_b32 {v(6)}, 0x7ff, {v(6)}")
        A(f"v_lshrrev_b32 {v(7)}, 5, {v(6)}"); A(f"v_lshlrev_b32 {v(7)}, 15, {v(7)}")
        A(f"v_and_b32 {v(6)}, 31, {v(6)}"); A(f"v_lshl_add_u32 {v(6)}, {v(6)}, 4, {v(7)}")
        A(f"v_add_u32 {v(14+b)}, {v(6)}, v5")
    A("s_waitcnt lgkmcnt(0)")
    apply_ln()
    A(f"v_mov_b32 v4, {hexf(GK2)}"); A(f"v_mov_b32 v5, {hexf(GK1)}"); A("v_mov_b32 v6, 1.0"); A("v_mov_b32 v7, 1.0")
    A("s_lshl_b32 s47, s51, 3"); A("s_lshl_b32 s53, s39, 2"); A("s_add_u32 s47, s47, s53"); A("s_lshl_b32 s47, s47, 10"); A(f"s_add_u32 s46, s47, {WS_HS:#x}")
    for b in range(2):
        for cb in range(2):
            a = 64 + 16*(2*b+cb)
            for half in range(2):
                gelu_regs(A, [a+8*half+2*j for j in range(4)], 16, 4, 6)
                d = 136 + 8*((2*b+cb) % 2) + 4*half
                for j in range(4):
                    A(f"v_cvt_pk_bf16_f32 {v(d+j)}, {v(a+8*half+2*j)}, {v(a+8*half+2*j+1)}")
                A(f"s_add_u32 s47, s46, {(2*cb+half)*1024}")
                A(f"buffer_store_dwordx4 {v(d,4)}, {v(14+b)}, s[28:31], s47 offen {OPTS['wt']}")
    w3_finish()
    A.label(f"{N}_done")
    A("s_endpgm")
    return A.text(), 232, LDS_A
```

```python
from common import *
from gemm64 import *

LDS_B = 49152 + 1024
NEGBIG = -1e30

def gen_B():
    A = Asm()
    N = "kB"
    A("s_cmp_ge_u32 s2, 768"); A(f"s_cbranch_scc1 {N}_done")
    A("s_load_dwordx2 s[4:5], s[0:1], 0")
    A("s_load_dwordx2 s[6:7], s[0:1], 40")
    A("s_load_dwordx2 s[22:23], s[0:1], 80")
    A("s_load_dwordx2 s[16:17], s[0:1], 48")
    A("v_lshrrev_b32 v1, 6, v0"); A("v_and_b32 v2, 63, v0"); A("v_readfirstlane_b32 s33, v1")
    A("s_cmp_lt_u32 s2, 512"); A(f"s_cbranch_scc1 {N}_attn")
    A("s_sub_u32 s25, s2, 512"); A("s_and_b32 s24, s25, 7"); A("s_lshr_b32 s25, s25, 3")
    A("s_lshr_b32 s26, s25, 3"); A("s_lshl_b32 s27, s24, 2"); A("s_add_u32 s26, s26, s27")
    A("s_and_b32 s27, s25, 7")
    A("s_mul_i32 s34, s33, 12288")
    A("s_lshl_b32 s35, s33, 3")
    A("s_waitcnt lgkmcnt(0)")
    srd(A, 8, 4, 0x200000); srd(A, 12, 6, 0x80000); srd(A, 28, 22, WS_SIZE)
    ACC = 64; VX = 16; VWF = 128; VT = 4
    def pre():
        A("s_lshr_b32 s40, s33, 1"); A("s_and_b32 s41, s33, 1")
        A("s_lshl_b32 s42, s26, 6"); A("s_lshl_b32 s43, s40, 5"); A("s_add_u32 s42, s42, s43")
        A("s_lshl_b32 s43, s27, 6"); A("s_lshl_b32 s44, s41, 5"); A("s_add_u32 s43, s43, s44")
        A("v_and_b32 v12, 31, v2"); A("v_lshrrev_b32 v13, 5, v2")
        A("v_lshlrev_b32 v14, 10, v12"); A("v_lshl_add_u32 v14, v13, 3, v14")
        A("s_lshl_b32 s44, s42, 10"); A("s_lshl_b32 s45, s43, 1"); A("s_add_u32 s44, s44, s45")
        for g in range(4):
            A(f"buffer_load_dwordx2 {v(144+2*g,2)}, v14, s[8:11], s44 offen offset:{g*16}")
        A("v_lshlrev_b32 v15, 4, v12")
        A("s_lshl_b32 s45, s42, 4"); A(f"s_add_u32 s45, s45, {WS_ST:#x}")
        A("buffer_load_dwordx2 v[152:153], v15, s[28:31], s45 offen")
        return 5
    gemm64(A, [Seg(WS_HS, 32, "s35", 8, "s[12:15]", 1024, 'perm', ACC)], 6, "s[28:31]", "s26", "s27", "s33", "s34", 2, VX, VWF, VT, 50, pre_hook=pre)
    A("s_nop 15")
    reduce_scatter(A, [ACC], "s33", "s34", 12288, 2, VT)
    A("s_waitcnt vmcnt(0)")
    A("v_mul_f32_e64 v154, -v152, v153")
    A("v_mov_b32 v155, v154"); A("v_mov_b32 v152, v153")
    for g in range(4):
        for p_ in range(2):
            src = 144 + 2*g + p_
            A(f"v_lshlrev_b32 v16, 16, {v(src)}"); A(f"v_and_b32 v17, 0xffff0000, {v(src)}")
            a = ACC + 4*g + 2*p_
            A(f"v_pk_fma_f32 {v(a,2)}, v[16:17], v[152:153], {v(a,2)}")
            A(f"v_pk_add_f32 {v(a,2)}, {v(a,2)}, v[154:155]")
    A(f"v_pk_add_f32 v[18:19], {v(ACC,2)}, {v(ACC+2,2)}")
    A(f"v_pk_mul_f32 v[20:21], {v(ACC,2)}, {v(ACC,2)}")
    A(f"v_pk_fma_f32 v[20:21], {v(ACC+2,2)}, {v(ACC+2,2)}, v[20:21]")
    for j in range(4, 16, 2):
        A(f"v_pk_add_f32 v[18:19], v[18:19], {v(ACC+j,2)}")
        A(f"v_pk_fma_f32 v[20:21], {v(ACC+j,2)}, {v(ACC+j,2)}, v[20:21]")
    A("v_add_f32 v18, v18, v19"); A("v_add_f32 v19, v20, v21")
    A("v_mov_b32 v20, v18"); A("v_mov_b32 v21, v19"); A("s_nop 1")
    A("v_permlane32_swap_b32 v18, v20"); A("v_permlane32_swap_b32 v19, v21"); A("s_nop 1")
    A("v_add_f32 v18, v18, v20"); A("v_add_f32 v19, v19, v21")
    for j in range(8): A(f"v_cvt_pk_bf16_f32 {v(24+j)}, {v(ACC+2*j)}, {v(ACC+2*j+1)}")
    A("s_lshl_b32 s44, s26, 1"); A("s_add_u32 s44, s44, s40"); A("s_lshl_b32 s44, s44, 5")
    A("s_lshl_b32 s45, s27, 2"); A("s_add_u32 s44, s44, s45"); A("s_lshl_b32 s45, s41, 1"); A("s_add_u32 s44, s44, s45")
    A("s_lshl_b32 s44, s44, 10"); A(f"s_add_u32 s44, s44, {WS_X1:#x}")
    A("v_lshlrev_b32 v22, 4, v2")
    A(f"buffer_store_dwordx4 v[24:27], v22, s[28:31], s44 offen {OPTS['wt']}")
    A(f"buffer_store_dwordx4 v[28:31], v22, s[28:31], s44 offen offset:1024 {OPTS['wt']}")
    A("s_lshl_b32 s44, s42, 7"); A("s_lshl_b32 s45, s27, 1"); A("s_add_u32 s45, s45, s41"); A("s_lshl_b32 s45, s45, 3"); A("s_add_u32 s44, s44, s45"); A(f"s_add_u32 s44, s44, {WS_ST1:#x}")
    A("v_lshlrev_b32 v23, 7, v12")
    A("s_mov_b32 exec_hi, 0")
    A(f"buffer_store_dwordx2 v[18:19], v23, s[28:31], s44 offen {OPTS['wt']}")
    A("s_endpgm")
    A.label(f"{N}_attn")
    A("s_and_b32 s24, s2, 7"); A("s_lshr_b32 s25, s2, 3")
    A("s_lshr_b32 s26, s25, 2"); A("s_sub_u32 s26, 15, s26")
    A("s_and_b32 s27, s25, 3"); A("s_lshl_b32 s28, s24, 2"); A("s_add_u32 s27, s27, s28")
    A("s_lshl_b32 s34, s26, 2"); A("s_add_u32 s35, s34, s33")
    A("s_waitcnt lgkmcnt(0)")
    A("s_lshl_b32 s36, s27, 16")
    A("s_add_u32 s8, s22, s36"); A("s_addc_u32 s9, s23, 0"); A(f"s_add_u32 s8, s8, {WS_K:#x}"); A("s_addc_u32 s9, s9, 0"); A("s_mov_b32 s10, 0x10000"); A("s_mov_b32 s11, 0x20000")
    A("s_add_u32 s12, s22, s36"); A("s_addc_u32 s13, s23, 0"); A(f"s_add_u32 s12, s12, {WS_V:#x}"); A("s_addc_u32 s13, s13, 0"); A("s_mov_b32 s14, 0x10000"); A("s_mov_b32 s15, 0x20000")
    srd(A, 28, 22, WS_SIZE)
    A("v_lshlrev_b32 v3, 4, v2")
    A("s_mul_i32 s37, s33, 3"); A("s_add_u32 s38, s34, s37"); A("s_sub_u32 s38, s38, 8"); A("s_lshl_b32 s38, s38, 10")
    A("s_lshl_b32 s37, s37, 10")
    A("s_mov_b32 s39, 0")
    for j in range(3):
        A(f"s_add_u32 s40, s38, {j*1024}")
        A("v_add_u32 v4, s40, v3")
        A(f"s_add_u32 m0, s37, {j*1024}"); A("s_nop 0")
        A(f"buffer_load_dwordx4 v4, s[8:11], s39 offen lds")
        A(f"s_add_u32 m0, s37, {j*1024 + 12288}"); A("s_nop 0")
        A(f"buffer_load_dwordx4 v4, s[12:15], s39 offen lds")
    VQ = 8
    A("s_lshl_b32 s40, s35, 10"); A("s_add_u32 s40, s40, s36"); A(f"s_add_u32 s40, s40, {WS_Q:#x}")
    A(f"buffer_load_dwordx4 {v(VQ,4)}, v3, s[28:31], s40 offen")
    A("v_mov_b32 v5, 0x3f803f80"); A("v_lshlrev_b32 v6, 2, v0"); A("ds_write_b32 v6, v5 offset:24576")
    VKA, VVA, VST = 6, 7, 12
    A("v_lshrrev_b32 v13, 5, v2"); A("v_lshlrev_b32 v14, 7, v13")
    A("v_bfe_u32 v15, v2, 1, 1"); A("v_lshl_add_u32 v14, v15, 6, v14")
    A("v_bfe_u32 v15, v2, 2, 2"); A("v_lshl_add_u32 v14, v15, 4, v14")
    A("v_and_b32 v15, 1, v2"); A("v_lshl_add_u32 v14, v15, 3, v14")
    A("v_add_u32 v14, 12288, v14")
    A("v_lshlrev_b32 v13, 7, v13"); A("v_xor_b32 v13, 128, v13"); A("v_add_u32 v13, 24576, v13")
    A("v_bfe_u32 v15, v2, 4, 1"); A("v_cmp_eq_u32 s[44:45], 0, v15")
    A("v_mov_b32 v15, 1024")
    A(f"v_cndmask_b32 {v(VST)}, 0, v15, s[44:45]")
    A("s_sub_u32 s46, 8, s34"); A("s_cmp_ge_u32 s26, 2"); A("s_cselect_b32 s46, s33, s46"); A("s_lshl_b32 s46, s46, 10")
    A("v_add_u32 v14, s46, v14")
    A(f"v_cndmask_b32 {v(VVA)}, v13, v14, s[44:45]")
    A(f"v_add_u32 {v(VKA)}, s46, v3")
    KF = [16, 20]; SB = [32, 48]; M0, M8, NM, PP, VF, O, MX = 64, 80, 96, 112, [120, 128], 136, 24
    A("v_and_b32 v13, 31, v2"); A("v_lshrrev_b32 v14, 5, v2"); A("v_lshlrev_b32 v14, 2, v14"); A("v_sub_u32 v13, v13, v14")
    A(f"v_mov_b32 v14, {hexf(NEGBIG)}")
    for r0 in (0, 8):
        for r in range(r0, r0 + 8):
            A(f"v_cmp_gt_i32 s[{48+2*(r-r0)}:{49+2*(r-r0)}], {8*(r//4) + r%4}, v13")
        for r in range(r0, r0 + 8):
            A(f"v_cndmask_b32 {v(M0+r)}, v14, 0, s[{48+2*(r-r0)}:{49+2*(r-r0)}]")
            A(f"v_cndmask_b32 {v(M8+r)}, 0, v14, s[{48+2*(r-r0)}:{49+2*(r-r0)}]")
    A.stamp(1)
    A("s_waitcnt vmcnt(0) lgkmcnt(0)")
    A("s_barrier")
    A.stamp(2)
    srd(A, 48, 16, 0x1C0000)
    A("v_mov_b32 v25, 14"); A("v_cmp_ge_u32 vcc, v2, v25"); A("s_nop 1"); A("v_cndmask_b32 v26, 0, 1, vcc")
    A("v_mul_u32_u24 v27, 14, v26"); A("v_sub_u32 v27, v2, v27"); A("v_lshlrev_b32 v27, 7, v27")
    A("v_mul_u32_u24 v26, 3584, v26"); A("v_add_u32 v27, v27, v26")
    A("s_lshl_b32 s52, s25, 3"); A("s_lshl_b32 s53, s33, 1"); A("s_add_u32 s52, s52, s53"); A("s_mul_i32 s52, s52, 3584")
    A("s_and_b32 s53, s24, 1"); A("s_mul_i32 s53, s53, 1792"); A("s_add_u32 s52, s52, s53")
    A("s_mov_b32 exec_lo, 0x0fffffff"); A("s_mov_b32 exec_hi, 0")
    if OPTS.get('b_pf', False): A("buffer_load_dword v153, v27, s[48:51], s52 offen")
    A("s_mov_b64 exec, -1")
    def ninstr(i0): return sum(1 for x in A.L[i0:] if x.startswith("    ") and not x.strip().startswith(";"))
    def pad(i0, need):
        n = ninstr(i0)
        if n < need: A(f"s_nop {need - n - 1}")
    def rdK(f, off): A(f"ds_read_b128 {v(f,4)}, {v(VKA)} offset:{off}")
    def rdV(f):
        for u in range(2):
            for e2 in range(2):
                A(f"ds_read_b64_tr_b16 {v(f+4*u+2*e2,2)}, {v(VVA)} offset:{(4*u+2*e2)*128}")
    def qk(S, kf, C):
        A(f"v_mfma_f32_32x32x16_bf16 {v(S,16)}, {v(kf,4)}, {v(VQ,4)}, {C}")
        return len(A.L)
    def maxred(S, first):
        for i in range(8):
            if first and i == 0: A(f"v_max_f32 {v(MX)}, {v(S)}, {v(S+1)}")
            else: A(f"v_max3_f32 {v(MX)}, {v(S+2*i)}, {v(S+2*i+1)}, {v(MX)}")
    def finish_max():
        A(f"v_mov_b32 v25, {v(MX)}"); A("s_nop 1")
        A(f"v_permlane32_swap_b32 {v(MX)}, v25"); A("s_nop 1")
        A(f"v_max_f32 {v(MX)}, {v(MX)}, v25")
        A(f"v_sub_f32 {v(NM)}, 0, {v(MX)}")
        for r in range(1, 16): A(f"v_mov_b32 {v(NM+r)}, {v(NM)}")
    def expcvt(S):
        for i in range(0, 16, 4):
            for k in range(4): A(f"v_exp_f32 {v(S+i+k)}, {v(S+i+k)}")
            if i == 12: A("s_nop 0")
            if i > 0:
                A(f"v_cvt_pk_bf16_f32 {v(PP+(i-4)//2)}, {v(S+i-4)}, {v(S+i-3)}"); A(f"v_cvt_pk_bf16_f32 {v(PP+(i-4)//2+1)}, {v(S+i-2)}, {v(S+i-1)}")
        A(f"v_cvt_pk_bf16_f32 {v(PP+6)}, {v(S+12)}, {v(S+13)}"); A(f"v_cvt_pk_bf16_f32 {v(PP+7)}, {v(S+14)}, {v(S+15)}")
    def pv(vf, first):
        A("s_nop 1")
        A(f"v_mfma_f32_32x32x16_bf16 {v(O,16)}, {v(vf,4)}, {v(PP,4)}, {'0' if first else v(O,16)}")
        A(f"v_mfma_f32_32x32x16_bf16 {v(O,16)}, {v(vf+4,4)}, {v(PP+4,4)}, {v(O,16)}")
        return len(A.L)
    A("s_cmp_lt_u32 s26, 2"); A(f"s_cbranch_scc1 {N}_slow")
    Cof = lambda j, a, b, c: (v(a,16) if j == 0 else v(c,16) if j == 8 else b)
    rdK(KF[0], 0); rdK(KF[1], 1024)
    A("s_waitcnt lgkmcnt(1)")
    mk = [None]*9
    mk[0] = qk(SB[0], KF[0], Cof(0, M0, "0", M8))
    for j in range(9):
        if j + 1 <= 8:
            A("s_waitcnt lgkmcnt(0)")
            mk[j+1] = qk(SB[(j+1)%2], KF[(j+1)%2], Cof(j+1, M0, "0", M8))
            if j + 2 <= 8: rdK(KF[j%2], (j+2)*1024)
        pad(mk[j], 12)
        maxred(SB[j%2], j == 0)
    A.stamp(3)
    finish_max()
    for r in range(16):
        A(f"v_sub_f32 {v(M0+r)}, {v(M0+r)}, {v(MX)}"); A(f"v_sub_f32 {v(M8+r)}, {v(M8+r)}, {v(MX)}")
    rdK(KF[0], 0); rdK(KF[1], 1024); rdV(VF[0])
    A("s_waitcnt lgkmcnt(5)")
    mk[0] = qk(SB[0], KF[0], Cof(0, M0, v(NM,16), M8))
    for j in range(9):
        if j + 1 <= 8:
            A("s_waitcnt lgkmcnt(4)")
            mk[j+1] = qk(SB[(j+1)%2], KF[(j+1)%2], Cof(j+1, M0, v(NM,16), M8))
            if j + 2 <= 8: rdK(KF[j%2], (j+2)*1024)
            A(f"v_add_u32 {v(VVA)}, {v(VVA)}, {v(VST)}")
            rdV(VF[(j+1)%2])
        pad(mk[j], 12)
        expcvt(SB[j%2])
        newer = (1 if j + 2 <= 8 else 0) + (4 if j + 1 <= 8 else 0)
        A(f"s_waitcnt lgkmcnt({newer})")
        last = pv(VF[j%2], j == 0)
    A(f"s_branch {N}_fin")
    A.label(f"{N}_slow")
    A(f"v_mov_b32 {v(MX)}, v14")
    A(f"v_mov_b32 v26, {v(VKA)}")
    A("s_mov_b32 s47, s35")
    lp, ex = A.uid(N), A.uid(N)
    A.label(lp)
    A("s_cmp_eq_u32 s47, 0"); A(f"s_cbranch_scc1 {ex}")
    A(f"ds_read_b128 {v(KF[0],4)}, v26"); A("s_waitcnt lgkmcnt(0)")
    qk(SB[0], KF[0], "0"); A("s_nop 15")
    maxred(SB[0], False)
    A("v_add_u32 v26, 1024, v26"); A("s_sub_u32 s47, s47, 1"); A(f"s_branch {lp}")
    A.label(ex)
    A(f"ds_read_b128 {v(KF[0],4)}, v26"); A("s_waitcnt lgkmcnt(0)")
    qk(SB[0], KF[0], v(M8,16)); A("s_nop 15")
    maxred(SB[0], False)
    finish_max()
    for r in range(16): A(f"v_sub_f32 {v(M8+r)}, {v(M8+r)}, {v(MX)}")
    for r in range(16): A(f"v_mov_b32 {v(O+r)}, 0")
    A("s_mov_b32 s47, s35")
    lp, ex = A.uid(N), A.uid(N)
    def slow_blk(C):
        A(f"ds_read_b128 {v(KF[0],4)}, {v(VKA)}"); rdV(VF[0]); A("s_waitcnt lgkmcnt(0)")
        qk(SB[0], KF[0], C); A("s_nop 15")
        expcvt(SB[0])
        pv(VF[0], False)
    A.label(lp)
    A("s_cmp_eq_u32 s47, 0"); A(f"s_cbranch_scc1 {ex}")
    slow_blk(v(NM,16))
    A(f"v_add_u32 {v(VKA)}, 1024, {v(VKA)}"); A(f"v_add_u32 {v(VVA)}, {v(VVA)}, {v(VST)}")
    A("s_sub_u32 s47, s47, 1"); A(f"s_branch {lp}")
    A.label(ex)
    slow_blk(v(M8,16))
    A.label(f"{N}_fin")
    A.stamp(4)
    A("s_nop 15")
    A(f"v_rcp_f32 v25, {v(O+8)}"); A("s_nop 0")
    for r in range(8): A(f"v_mul_f32 {v(O+r)}, {v(O+r)}, v25")
    for j in range(4): A(f"v_cvt_pk_bf16_f32 {v(28+j)}, {v(O+2*j)}, {v(O+2*j+1)}")
    A("s_lshl_b32 s40, s35, 5"); A("s_add_u32 s40, s40, s27"); A("s_lshl_b32 s40, s40, 10"); A(f"s_add_u32 s40, s40, {WS_O:#x}")
    A(f"buffer_store_dwordx4 v[28:31], v3, s[28:31], s40 offen {OPTS['wt']}")
    A.label(f"{N}_done")
    A("s_endpgm")
    return A.text(), 160, LDS_B
```

```python
from common import *
from gemm_core import *

LDS_C = 131072 + 2048
def gen_C():
    A = Asm()
    N = "kC"
    A("s_cmp_ge_u32 s2, 256"); A(f"s_cbranch_scc1 {N}_done")
    A("s_and_b32 s24, s2, 7"); A("s_lshr_b32 s25, s2, 3")
    A("s_load_dwordx2 s[18:19], s[0:1], 48")
    A("s_load_dwordx2 s[22:23], s[0:1], 80")
    A("s_load_dwordx2 s[4:5], s[0:1], 16")
    A("s_load_dwordx2 s[6:7], s[0:1], 56")
    A("s_mul_i32 s26, s25, 37"); A("s_lshr_b32 s26, s26, 8")
    A("s_mul_i32 s27, s26, 7"); A("s_sub_u32 s27, s25, s27")
    A("s_lshr_b32 s28, s24, 1"); A("s_lshl_b32 s28, s28, 2"); A("s_add_u32 s26, s26, s28")
    A("s_and_b32 s28, s24, 1"); A("s_mul_i32 s28, s28, 7"); A("s_add_u32 s27, s27, s28")
    A("v_lshrrev_b32 v1, 6, v0"); A("v_and_b32 v2, 63, v0"); A("v_readfirstlane_b32 s33, v1")
    A("s_mov_b32 s37, 0")
    A("s_movk_i32 s34, 3584"); A("s_lshl_b32 s35, s27, 8")
    A("s_waitcnt lgkmcnt(0)")
    srd(A, 12, 18, 0x1C0000); srd(A, 28, 22, WS_SIZE)
    A("s_cmp_ge_u32 s33, 4"); A(f"s_cbranch_scc1 {N}_loader")
    def pf_x1():
        A("s_lshr_b32 s50, s24, 1"); A("s_lshl_b32 s50, s50, 4"); A("s_lshr_b32 s51, s25, 1"); A("s_add_u32 s50, s50, s51")
        A("s_lshl_b32 s50, s50, 5"); A("s_and_b32 s51, s25, 1"); A("s_lshl_b32 s51, s51, 3"); A("s_add_u32 s50, s50, s51")
        A("s_lshl_b32 s50, s50, 10"); A(f"s_add_u32 s50, s50, {WS_X1:#x}")
        A("v_lshlrev_b32 v4, 7, v2")
        A("buffer_load_dword v150, v4, s[28:31], s50 offen")
        A("s_add_u32 s50, s50, 16384")
        A("buffer_load_dword v151, v4, s[28:31], s50 offen")
    def pf_w4():
        srd(A, 52, 6, 0x1C0000); srd(A, 56, 4, 0x80000)
        A("v_lshrrev_b32 v4, 2, v2"); A("v_and_b32 v5, 3, v2"); A("v_lshlrev_b32 v5, 7, v5"); A("v_lshl_add_u32 v4, v4, 10, v5")
        A("s_and_b32 s50, s24, 1"); A("s_lshl_b32 s50, s50, 9")
        A("s_lshl_b32 s51, s25, 14"); A("s_add_u32 s51, s51, s50")
        A("buffer_load_dword v145, v4, s[56:59], s51 offen")
        A("s_mul_i32 s51, s25, 57344"); A("s_add_u32 s51, s51, s50")
        for j in range(4):
            if j == 3: A("s_mov_b32 exec_hi, 0")
            A(f"buffer_load_dword {v(146+j)}, v4, s[52:55], s51 offen")
            A("s_add_u32 s51, s51, 16384")
        A("s_mov_b32 exec_hi, -1")
    l1 = A.uid(N)
    A("s_cmp_lg_u32 s33, 0"); A(f"s_cbranch_scc1 {l1}")
    if OPTS.get('c_pfx', False): pf_x1()
    A.label(l1)
    l2 = A.uid(N)
    A("s_cmp_lt_u32 s25, 28"); A(f"s_cbranch_scc1 {l2}")
    A("s_cmp_lg_u32 s33, 1"); A(f"s_cbranch_scc1 {N}_done")
    pf_w4()
    A(f"s_branch {N}_done")
    A.label(l2)
    def stats_issue():
        A("v_and_b32 v12, 31, v2"); A("v_lshrrev_b32 v13, 5, v2"); A("v_lshlrev_b32 v14, 7, v12"); A("v_lshl_add_u32 v14, v13, 6, v14")
        A("s_lshl_b32 s50, s26, 7"); A("s_lshl_b32 s51, s33, 5"); A("s_add_u32 s50, s50, s51"); A("s_lshl_b32 s50, s50, 7"); A(f"s_add_u32 s50, s50, {WS_ST1:#x}")
        for j in range(4): A(f"buffer_load_dwordx4 {v(16+4*j,4)}, v14, s[28:31], s50 offen offset:{16*j}")
        A("v_lshlrev_b32 v15, 2, v12"); A("v_lshl_add_u32 v15, v13, 12, v15")
        A("s_lshl_b32 s50, s27, 13"); A("s_lshl_b32 s51, s33, 7"); A("s_add_u32 s50, s50, s51"); A(f"s_add_u32 s50, s50, {WS_CS3:#x}")
        for j in range(8): A(f"buffer_load_dword {v(32+j)}, v15, s[28:31], s50 offen offset:{512*j}")
    def stats_finish():
        A("v_pk_add_f32 v[16:17], v[16:17], v[18:19]"); A("v_pk_add_f32 v[20:21], v[20:21], v[22:23]")
        A("v_pk_add_f32 v[24:25], v[24:25], v[26:27]"); A("v_pk_add_f32 v[28:29], v[28:29], v[30:31]")
        A("v_pk_add_f32 v[16:17], v[16:17], v[20:21]"); A("v_pk_add_f32 v[24:25], v[24:25], v[28:29]")
        A("v_pk_add_f32 v[16:17], v[16:17], v[24:25]")
        for j in range(1, 8, 2): A(f"v_add_f32 {v(32+j-1)}, {v(32+j-1)}, {v(32+j)}")
        A("v_add_f32 v32, v32, v34"); A("v_add_f32 v36, v36, v38"); A("v_add_f32 v32, v32, v36")
        A("v_mov_b32 v18, v16"); A("v_mov_b32 v19, v17"); A("v_mov_b32 v33, v32"); A("s_nop 1")
        A("v_permlane32_swap_b32 v16, v18"); A("v_permlane32_swap_b32 v17, v19"); A("v_permlane32_swap_b32 v32, v33"); A("s_nop 1")
        A("v_add_f32 v16, v16, v18"); A("v_add_f32 v17, v17, v19"); A("v_add_f32 v32, v32, v33")
        A(f"v_mul_f32 v16, {hexf(1/512)}, v16"); A(f"v_mul_f32 v17, {hexf(1/512)}, v17")
        A("v_fma_f32 v17, -v16, v16, v17"); A("v_max_f32 v17, 0, v17"); A(f"v_add_f32 v17, {hexf(EPS)}, v17")
        A("v_rsq_f32 v20, v17"); A("s_nop 0")
        A("v_mul_f32_e64 v21, -v16, v20")
        A("v_lshlrev_b32 v22, 3, v12"); A("s_lshl_b32 s50, s33, 8"); A("s_add_u32 s50, s50, 131072"); A("v_add_u32 v22, s50, v22")
        A("v_lshlrev_b32 v23, 2, v12"); A("s_lshl_b32 s50, s33, 7"); A("s_add_u32 s50, s50, 132096"); A("v_add_u32 v23, s50, v23")
        A("s_mov_b32 exec_hi, 0")
        A("ds_write_b64 v22, v[20:21]"); A("ds_write_b32 v23, v32")
        A("s_mov_b32 exec_hi, -1")
        A("s_waitcnt lgkmcnt(0)")
    A.stamp(0)
    stats_issue()
    A("s_waitcnt vmcnt(0)")
    stats_finish()
    A("s_lshr_b32 s38, s33, 1"); A("s_and_b32 s39, s33, 1")
    compute_setup(A, 'frag', "s38", "s39", 8, 12, 4)
    def chook(ch, ks):
        if ch == OPTS.get('c_pf_ch', 99) and ks == 3:
            l3 = A.uid(N)
            A("s_cmp_lg_u32 s33, 1"); A(f"s_cbranch_scc1 {l3}")
            pf_w4()
            A.label(l3)
    compute_loop(A, 'frag', 64, 8, 12, 16, 32, hook=chook)
    A("v_and_b32 v4, 31, v2"); A("v_lshlrev_b32 v4, 3, v4"); A("s_lshl_b32 s46, s38, 9"); A("s_add_u32 s46, s46, 131072"); A("v_add_u32 v4, s46, v4")
    A("ds_read_b64 v[52:53], v4"); A("ds_read_b64 v[54:55], v4 offset:256")
    A("v_lshrrev_b32 v51, 5, v2"); A("v_lshlrev_b32 v51, 4, v51"); A("s_lshl_b32 s46, s39, 8"); A("s_add_u32 s46, s46, 132096"); A("v_add_u32 v51, s46, v51")
    for cb in range(2):
        for g in range(4):
            A(f"ds_read_b128 {v(16+16*cb+4*g,4)}, v51 offset:{cb*128+g*32}")
    A("s_waitcnt lgkmcnt(0)")
    for b in range(2):
        for cb in range(2):
            for j in range(8):
                A(f"v_pk_mul_f32 {v(56+2*(j%4),2)}, {v(16+16*cb+2*j,2)}, {v(52+2*b,2)} op_sel:[0,1] op_sel_hi:[1,1]")
                a = 64 + 16*(2*b+cb) + 2*j
                A(f"v_pk_fma_f32 {v(a,2)}, {v(a,2)}, {v(52+2*b,2)}, {v(56+2*(j%4),2)} op_sel_hi:[1,0,1]")
    A.stamp(6)
    A(f"v_mov_b32 v4, {hexf(GK2)}"); A(f"v_mov_b32 v5, {hexf(GK1)}"); A("v_mov_b32 v6, 1.0"); A("v_mov_b32 v7, 1.0")
    A("v_lshlrev_b32 v14, 4, v2")
    A("s_lshl_b32 s46, s26, 2"); A("s_lshl_b32 s47, s38, 1"); A("s_add_u32 s46, s46, s47"); A("s_mul_i32 s46, s46, 112")
    A("s_lshl_b32 s47, s27, 3"); A("s_add_u32 s46, s46, s47"); A("s_lshl_b32 s47, s39, 2"); A("s_add_u32 s46, s46, s47")
    A("s_lshl_b32 s46, s46, 10"); A(f"s_add_u32 s46, s46, {WS_U:#x}")
    for b in range(2):
        for cb in range(2):
            a = 64 + 16*(2*b+cb)
            for half in range(2):
                gelu_regs(A, [a+8*half+2*j for j in range(4)], 16, 4, 6)
                d = 128 + 8*((2*b+cb) % 2) + 4*half
                for j in range(4):
                    A(f"v_cvt_pk_bf16_f32 {v(d+j)}, {v(a+8*half+2*j)}, {v(a+8*half+2*j+1)}")
                A(f"s_add_u32 s47, s46, {(b*112 + 2*cb+half)*1024}")
                A(f"buffer_store_dwordx4 {v(d,4)}, v14, s[28:31], s47 offen {OPTS['wt']}")
    A("s_endpgm")
    A.label(f"{N}_loader")
    A("s_cmp_ge_u32 s25, 28"); A(f"s_cbranch_scc1 {N}_done")
    A("s_sub_u32 s38, s33, 4")
    loader_setup(A, 'frag', 8, 9, 10, 4, "s34")
    A("s_lshl_b32 s40, s26, 2"); A("s_add_u32 s40, s40, s38"); A("s_lshl_b32 s40, s40, 15"); A(f"s_add_u32 s40, s40, {WS_X1:#x}")
    A("s_lshl_b32 s41, s38, 4"); A("s_mul_i32 s41, s41, s34"); A("s_add_u32 s41, s41, s35")
    A("s_lshl_b32 s42, s34, 2"); A("s_lshl_b32 s43, s34, 6")
    A("s_lshl_b32 s44, s38, 12"); A("s_lshl_b32 s45, s38, 12")
    loader_loop_c(A, "s[28:31]", "s[12:15]", 8, 9, 10, "s40", "s41", "4096", "s43", "s42", "s44", "s45", "s46", "s37", "s47", "s48")
    A.label(f"{N}_done")
    A("s_endpgm")
    return A.text(), 152, LDS_C

def loader_loop_c(A, srdX, srdW, vXe, vXo, vW, sXbase, sWbase, sXadv, sWadv, sWstep, sLdsX, sLdsW, stmp, sRot, sXoff, sWoff, nchunk=8):
    loader_loop(A, 'frag', srdX, srdW, vXe, vXo, vW, sXbase, sWbase, sXadv, sWadv, sWstep, sLdsX, sLdsW, stmp, sRot, sXoff, sWoff)
```

```python
from common import *
from gemm64 import *

LDS_D = 4 * 24576
PD = 5
def gen_D():
    A = Asm()
    N = "kD"
    A("s_cmp_ge_u32 s2, 256"); A(f"s_cbranch_scc1 {N}_done")
    A("s_load_dwordx2 s[4:5], s[0:1], 0")
    A("s_load_dwordx2 s[6:7], s[0:1], 16")
    A("s_load_dwordx2 s[16:17], s[0:1], 56")
    A("s_load_dwordx2 s[18:19], s[0:1], 64")
    A("s_load_dwordx2 s[22:23], s[0:1], 80")
    A("v_lshrrev_b32 v1, 6, v0"); A("v_and_b32 v2, 63, v0"); A("v_readfirstlane_b32 s33, v1")
    A("s_and_b32 s24, s2, 7"); A("s_lshr_b32 s25, s2, 3")
    A("s_lshr_b32 s26, s24, 1"); A("s_lshl_b32 s26, s26, 3"); A("s_lshr_b32 s27, s25, 2"); A("s_add_u32 s26, s26, s27")
    A("s_and_b32 s27, s24, 1"); A("s_lshl_b32 s27, s27, 2"); A("s_and_b32 s28, s25, 3"); A("s_add_u32 s27, s27, s28")
    A("s_mul_i32 s34, s33, 24576")
    A("s_mul_i32 s35, s33, 28")
    A("s_lshl_b32 s36, s33, 3")
    A("s_waitcnt lgkmcnt(0)")
    srd(A, 8, 4, 0x200000); srd(A, 12, 6, 0x80000); srd(A, 40, 16, 0x1C0000); srd(A, 44, 18, 0x200000); srd(A, 28, 22, WS_SIZE)
    A("s_cmp_eq_u32 s33, 4"); A(f"s_cbranch_scc1 {N}_pf")
    ACH, ACS, VX, VWF, VT = 128, 192, 16, 96, 4
    XR, X1R = 112, 120
    def pre():
        A("s_lshr_b32 s60, s33, 1"); A("s_and_b32 s61, s33, 1")
        A("s_lshl_b32 s62, s26, 6"); A("s_lshl_b32 s63, s60, 5"); A("s_add_u32 s62, s62, s63")
        A("s_lshl_b32 s63, s27, 6"); A("s_lshl_b32 s64, s61, 5"); A("s_add_u32 s63, s63, s64")
        A("v_and_b32 v12, 31, v2"); A("v_lshrrev_b32 v13, 5, v2")
        A("v_lshlrev_b32 v14, 10, v12"); A("v_lshl_add_u32 v14, v13, 3, v14")
        A("s_lshl_b32 s64, s62, 10"); A("s_lshl_b32 s65, s63, 1"); A("s_add_u32 s64, s64, s65")
        for g in range(4):
            A(f"buffer_load_dwordx2 {v(XR+2*g,2)}, v14, s[8:11], s64 offen offset:{g*16}")
        A("s_lshl_b32 s59, s26, 1"); A("s_add_u32 s59, s59, s60"); A("s_lshl_b32 s59, s59, 5")
        A("s_lshl_b32 s65, s27, 2"); A("s_add_u32 s59, s59, s65"); A("s_lshl_b32 s65, s61, 1"); A("s_add_u32 s59, s59, s65")
        A("s_lshl_b32 s59, s59, 10"); A(f"s_add_u32 s59, s59, {WS_X1:#x}")
        A(f"buffer_load_dwordx4 {v(X1R,4)}, v4, s[28:31], s59 offen")
        A(f"buffer_load_dwordx4 {v(X1R+4,4)}, v4, s[28:31], s59 offen offset:1024")
        return 6
    segs = [Seg(WS_O, 32, "s36", 8, "s[12:15]", 1024, 'nat', ACS), Seg(WS_U, 112, "s35", 28, "s[40:43]", 1024, 'perm', ACH)]
    gemm64(A, segs, OPTS.get('d_P', PD), "s[28:31]", "s26", "s27", "s33", "s34", 2, VX, VWF, VT, 50, pre_hook=pre)
    A("s_nop 15")
    reduce_scatter(A, [ACH, ACS], "s33", "s34", 24576, 2, VT)
    A("s_waitcnt vmcnt(0)")
    A(f"v_mov_b32 v16, {hexf(-LOG2E)}"); A(f"v_mov_b32 v17, {hexf(-LOG2E)}"); A("v_mov_b32 v18, 1.0"); A("v_mov_b32 v19, 1.0")
    for j in range(8):
        A(f"v_lshlrev_b32 v20, 16, {v(X1R+j)}"); A(f"v_and_b32 v21, 0xffff0000, {v(X1R+j)}")
        A(f"v_pk_add_f32 {v(ACH+2*j,2)}, {v(ACH+2*j,2)}, v[20:21]")
    for j in range(8): A(f"v_pk_mul_f32 {v(32+2*j,2)}, {v(ACH+2*j,2)}, v[16:17]")
    for j in range(16): A(f"v_exp_f32 {v(32+j)}, {v(32+j)}")
    A("s_nop 0")
    for j in range(8): A(f"v_pk_add_f32 {v(32+2*j,2)}, {v(32+2*j,2)}, v[18:19]")
    for j in range(16): A(f"v_rcp_f32 {v(32+j)}, {v(32+j)}")
    A("s_nop 0")
    for j in range(8): A(f"v_pk_mul_f32 {v(ACH+2*j,2)}, {v(ACH+2*j,2)}, {v(32+2*j,2)}")
    for j in range(8):
        A(f"v_lshlrev_b32 v20, 16, {v(XR+j)}"); A(f"v_and_b32 v21, 0xffff0000, {v(XR+j)}")
        A(f"v_pk_fma_f32 {v(ACH+2*j,2)}, {v(ACH+2*j,2)}, {v(ACS+2*j,2)}, v[20:21]")
    for j in range(8): A(f"v_cvt_pk_bf16_f32 {v(48+j)}, {v(ACH+2*j)}, {v(ACH+2*j+1)}")
    for g in range(4):
        A(f"buffer_store_dwordx2 {v(48+2*g,2)}, v14, s[44:47], s64 offen offset:{g*16} {OPTS['wt']}")
    A("s_endpgm")
    A.label(f"{N}_pf")
    if not OPTS.get('d_pf', False): A("s_endpgm")
    if OPTS.get('d_sleep', 0): A(f"s_sleep {OPTS['d_sleep']}")
    A("s_lshr_b32 s40, s24, 1"); A("s_lshl_b32 s40, s40, 4"); A("s_lshr_b32 s41, s25, 1"); A("s_add_u32 s40, s40, s41")
    A("s_and_b32 s41, s25, 1"); A("s_lshl_b32 s41, s41, 1")
    A("v_lshrrev_b32 v4, 5, v2"); A("v_add_u32 v4, s41, v4")
    A("v_bfe_u32 v5, v2, 3, 2")
    A("v_and_b32 v6, 7, v2"); A("v_lshlrev_b32 v6, 7, v6")
    A("v_lshlrev_b32 v7, 3, v4"); A("v_add_u32 v7, v7, v5"); A("v_lshl_add_u32 v7, v7, 10, v6")
    A("s_lshl_b32 s42, s40, 15"); A(f"s_add_u32 s42, s42, {WS_O:#x}")
    A("buffer_load_dword v10, v7, s[28:31], s42 offen")
    A("s_add_u32 s42, s42, 4096")
    A("buffer_load_dword v11, v7, s[28:31], s42 offen")
    A("v_mul_u32_u24 v7, 28, v4"); A("v_add_u32 v7, v7, v5"); A("v_lshl_add_u32 v7, v7, 10, v6")
    A("s_mul_i32 s42, s40, 112"); A("s_lshl_b32 s42, s42, 10"); A(f"s_add_u32 s42, s42, {WS_U:#x}")
    for tg in range(7):
        A(f"buffer_load_dword {v(12+tg)}, v7, s[28:31], s42 offen")
        A("s_add_u32 s42, s42, 4096")
    A.label(f"{N}_done")
    A("s_endpgm")
    return A.text(), 256, LDS_D
```

```python
import sys
from common import *
HEADER = """; Kernarg layout (88 bytes, ptrs only, base s[0:1]):
"""
def add_stamps(name, text, kidx):
    pre = "    s_memtime s[66:67]\n" + "".join(f"    s_mov_b64 s[{68+2*i}:{69+2*i}], 0\n" for i in range(9)) + "    s_memrealtime s[92:93]\n    s_mov_b32 s91, s2\n    v_lshrrev_b32 v1, 6, v0\n    s_nop 0\n    v_readfirstlane_b32 s87, v1\n"
    n = [0]
    post = f"""    s_memtime s[62:63]
    s_waitcnt vmcnt(0)
    s_memtime s[60:61]
    s_memrealtime s[94:95]
    s_load_dwordx2 s[88:89], s[0:1], 80
    s_mov_b64 exec, 1
    s_waitcnt lgkmcnt(0)
    s_lshl_b32 s91, s91, 4
    s_add_u32 s91, s91, s87
    s_lshl_b32 s91, s91, 4
    s_add_u32 s91, s91, {WS_DBG + kidx*0x40000:#x}
    v_mov_b32 v0, s91
    v_mov_b32 v2, s92
    v_mov_b32 v3, s93
    v_mov_b32 v4, s94
    v_mov_b32 v5, s95
    global_store_dwordx4 v0, v[2:5], s[88:89]
    s_lshl_b32 s91, s91, 2
    s_add_u32 s91, s91, {(WS_DBG + 0x100000*(1+kidx) - 4*(WS_DBG + kidx*0x40000)) & 0xffffffff:#x}
    v_mov_b32 v0, s91
""" + "".join(f"    s_sub_u32 s{68+2*i}, s{68+2*i}, s66\n    v_mov_b32 v2, s{68+2*i}\n    global_store_dword v0, v2, s[88:89] offset:{4*i}\n" for i in range(9)) + """    s_sub_u32 s62, s62, s66
    v_mov_b32 v2, s62
    global_store_dword v0, v2, s[88:89] offset:36
    s_sub_u32 s60, s60, s66
    v_mov_b32 v2, s60
    global_store_dword v0, v2, s[88:89] offset:40
    s_endpgm
"""
    return pre + text.replace("    s_endpgm\n", post)

def build(kernels, stamps=False):
    if stamps:
        kernels = [(n, g, b, add_stamps(n, t, i), vg, l) for i, (n, g, b, t, vg, l) in enumerate(kernels)]
    s = HEADER
    for (name, grid, block, text, vgpr, lds) in kernels:
        s += f"; @launch kernel={name}_kernel grid=({grid},1,1) block=({block},1,1) lds={lds}\n"
    s += '.amdgcn_target "amdgcn-amd-amdhsa--gfx950"\n.text\n'
    seen = set()
    for (name, grid, block, text, vgpr, lds) in kernels:
        if name in seen: continue
        seen.add(name)
        s += kernel_head(name + "_kernel") + text
    s += "text_end_marker:\n    s_endpgm\n"
    s += '.section .rodata,"a"\n'
    seen = set()
    for (name, grid, block, text, vgpr, lds) in kernels:
        if name in seen: continue
        seen.add(name)
        s += kernel_desc(name + "_kernel", vgpr, 96)
    return s

def all_kernels(which="ABCD", stamps=False, **opts):
    Asm.STAMP = stamps
    import common
    common.OPTS.update(opts)
    K = []
    if "A" in which:
        from kA import gen_A
        t, vg, lds = gen_A(); K.append(("kA", 256, 512, t, vg, lds))
    if "B" in which:
        from kB import gen_B
        t, vg, lds = gen_B(); K.append(("kB", 768, 256, t, vg, lds))
    if "C" in which:
        from kC import gen_C
        t, vg, lds = gen_C(); K.append(("kC", 256, 512, t, vg, lds))
    if "D" in which:
        from kD import gen_D
        t, vg, lds = gen_D(); K.append(("kD", 256, 320, t, vg, lds))
    return K

if __name__ == "__main__":
    which = sys.argv[1] if len(sys.argv) > 1 else "ABCD"
    out = sys.argv[2] if len(sys.argv) > 2 else "out.s"
    open(out, "w").write(build(all_kernels(which)))
    import subprocess
    r = subprocess.run(["clang", "-x", "assembler", "-target", "amdgcn-amd-amdhsa", "-mcpu=gfx950", "-c", out, "-o", "out.o"], capture_output=True, text=True)
    print(r.stderr[:3000] if r.returncode else "assembled ok")
```

```python
from common import *
NEGBIG = -1e30
def body(A, N, R, sQG, sQB, slow_cond):
    VQ, VKA, VVA, VST, KF, SB, M0, M8, NM, PP, VF, O, MX = (R[k] for k in ("VQ", "VKA", "VVA", "VST", "KF", "SB", "M0", "M8", "NM", "PP", "VF", "O", "MX"))
    uid = A.uid(N + "a")
    N = uid
    A("v_and_b32 v13, 31, v2"); A("v_lshrrev_b32 v14, 5, v2"); A("v_lshlrev_b32 v14, 2, v14"); A("v_sub_u32 v13, v13, v14")
    A(f"v_mov_b32 v14, {hexf(NEGBIG)}")
    for r0 in range(0, 16, 4):
        for r in range(r0, r0 + 4):
            A(f"v_cmp_gt_i32 s[{48+2*(r-r0)}:{49+2*(r-r0)}], {8*(r//4) + r%4}, v13")
        for r in range(r0, r0 + 4):
            A(f"v_cndmask_b32 {v(M0+r)}, v14, 0, s[{48+2*(r-r0)}:{49+2*(r-r0)}]")
            A(f"v_cndmask_b32 {v(M8+r)}, 0, v14, s[{48+2*(r-r0)}:{49+2*(r-r0)}]")
    def ninstr(i0): return sum(1 for x in A.L[i0:] if x.startswith("    ") and not x.strip().startswith(";"))
    def pad(i0, need):
        n = ninstr(i0)
        if n < need: A(f"s_nop {need - n - 1}")
    def rdK(f, off): A(f"ds_read_b128 {v(f,4)}, {v(VKA)} offset:{off}")
    def rdV(f):
        for u in range(2):
            for e2 in range(2):
                A(f"ds_read_b64_tr_b16 {v(f+4*u+2*e2,2)}, {v(VVA)} offset:{(4*u+2*e2)*128}")
    def qk(S, kf, C):
        A(f"v_mfma_f32_32x32x16_bf16 {v(S,16)}, {v(kf,4)}, {v(VQ,4)}, {C}")
        return len(A.L)
    def maxred(S, first):
        for i in range(8):
            if first and i == 0: A(f"v_max_f32 {v(MX)}, {v(S)}, {v(S+1)}")
            else: A(f"v_max3_f32 {v(MX)}, {v(S+2*i)}, {v(S+2*i+1)}, {v(MX)}")
    def finish_max():
        A(f"v_mov_b32 v25, {v(MX)}"); A("s_nop 1")
        A(f"v_permlane32_swap_b32 {v(MX)}, v25"); A("s_nop 1")
        A(f"v_max_f32 {v(MX)}, {v(MX)}, v25")
        A(f"v_sub_f32 {v(NM)}, 0, {v(MX)}")
        for r in range(1, 16): A(f"v_mov_b32 {v(NM+r)}, {v(NM)}")
    def expcvt(S):
        for i in range(0, 16, 4):
            for k in range(4): A(f"v_exp_f32 {v(S+i+k)}, {v(S+i+k)}")
            if i == 12: A("s_nop 0")
            if i > 0:
                A(f"v_cvt_pk_bf16_f32 {v(PP+(i-4)//2)}, {v(S+i-4)}, {v(S+i-3)}"); A(f"v_cvt_pk_bf16_f32 {v(PP+(i-4)//2+1)}, {v(S+i-2)}, {v(S+i-1)}")
        A(f"v_cvt_pk_bf16_f32 {v(PP+6)}, {v(S+12)}, {v(S+13)}"); A(f"v_cvt_pk_bf16_f32 {v(PP+7)}, {v(S+14)}, {v(S+15)}")
    def pv(vf, first):
        A("s_nop 1")
        A(f"v_mfma_f32_32x32x16_bf16 {v(O,16)}, {v(vf,4)}, {v(PP,4)}, {'0' if first else v(O,16)}")
        A(f"v_mfma_f32_32x32x16_bf16 {v(O,16)}, {v(vf+4,4)}, {v(PP+4,4)}, {v(O,16)}")
        return len(A.L)
    A(f"s_cmp_lt_u32 {sQG}, {slow_cond}"); A(f"s_cbranch_scc1 {N}_slow")
    Cof = lambda j, a, b, c: (v(a,16) if j == 0 else v(c,16) if j == 8 else b)
    rdK(KF[0], 0); rdK(KF[1], 1024)
    A("s_waitcnt lgkmcnt(1)")
    mk = [None]*9
    mk[0] = qk(SB[0], KF[0], Cof(0, M0, "0", M8))
    for j in range(9):
        if j + 1 <= 8:
            A("s_waitcnt lgkmcnt(0)")
            mk[j+1] = qk(SB[(j+1)%2], KF[(j+1)%2], Cof(j+1, M0, "0", M8))
            if j + 2 <= 8: rdK(KF[j%2], (j+2)*1024)
        pad(mk[j], 12)
        maxred(SB[j%2], j == 0)
    A.stamp(3)
    finish_max()
    for r in range(16):
        A(f"v_sub_f32 {v(M0+r)}, {v(M0+r)}, {v(MX)}"); A(f"v_sub_f32 {v(M8+r)}, {v(M8+r)}, {v(MX)}")
    rdK(KF[0], 0); rdK(KF[1], 1024); rdV(VF[0])
    A("s_waitcnt lgkmcnt(5)")
    mk[0] = qk(SB[0], KF[0], Cof(0, M0, v(NM,16), M8))
    for j in range(9):
        if j + 1 <= 8:
            A("s_waitcnt lgkmcnt(4)")
            mk[j+1] = qk(SB[(j+1)%2], KF[(j+1)%2], Cof(j+1, M0, v(NM,16), M8))
            if j + 2 <= 8: rdK(KF[j%2], (j+2)*1024)
            A(f"v_add_u32 {v(VVA)}, {v(VVA)}, {v(VST)}")
            rdV(VF[(j+1)%2])
        pad(mk[j], 12)
        expcvt(SB[j%2])
        newer = (1 if j + 2 <= 8 else 0) + (4 if j + 1 <= 8 else 0)
        A(f"s_waitcnt lgkmcnt({newer})")
        last = pv(VF[j%2], j == 0)
    A(f"s_branch {N}_fin")
    A.label(f"{N}_slow")
    A(f"v_mov_b32 {v(MX)}, v14")
    A(f"v_mov_b32 v26, {v(VKA)}")
    A(f"s_mov_b32 s47, {sQB}")
    lp, ex = A.uid(N), A.uid(N)
    A.label(lp)
    A("s_cmp_eq_u32 s47, 0"); A(f"s_cbranch_scc1 {ex}")
    A(f"ds_read_b128 {v(KF[0],4)}, v26"); A("s_waitcnt lgkmcnt(0)")
    qk(SB[0], KF[0], "0"); A("s_nop 15")
    maxred(SB[0], False)
    A("v_add_u32 v26, 1024, v26"); A("s_sub_u32 s47, s47, 1"); A(f"s_branch {lp}")
    A.label(ex)
    A(f"ds_read_b128 {v(KF[0],4)}, v26"); A("s_waitcnt lgkmcnt(0)")
    qk(SB[0], KF[0], v(M8,16)); A("s_nop 15")
    maxred(SB[0], False)
    finish_max()
    for r in range(16): A(f"v_sub_f32 {v(M8+r)}, {v(M8+r)}, {v(MX)}")
    for r in range(16): A(f"v_mov_b32 {v(O+r)}, 0")
    A(f"s_mov_b32 s47, {sQB}")
    lp, ex = A.uid(N), A.uid(N)
    def slow_blk(C):
        A(f"ds_read_b128 {v(KF[0],4)}, {v(VKA)}"); rdV(VF[0]); A("s_waitcnt lgkmcnt(0)")
        qk(SB[0], KF[0], C); A("s_nop 15")
        expcvt(SB[0])
        pv(VF[0], False)
    A.label(lp)
    A("s_cmp_eq_u32 s47, 0"); A(f"s_cbranch_scc1 {ex}")
    slow_blk(v(NM,16))
    A(f"v_add_u32 {v(VKA)}, 1024, {v(VKA)}"); A(f"v_add_u32 {v(VVA)}, {v(VVA)}, {v(VST)}")
    A("s_sub_u32 s47, s47, 1"); A(f"s_branch {lp}")
    A.label(ex)
    slow_blk(v(M8,16))
    A.label(f"{N}_fin")
    A.stamp(4)
    A("s_nop 15")
    A(f"v_rcp_f32 v25, {v(O+8)}"); A("s_nop 0")
    for r in range(8): A(f"v_mul_f32 {v(O+r)}, {v(O+r)}, v25")
    for j in range(4): A(f"v_cvt_pk_bf16_f32 {v(28+j)}, {v(O+2*j)}, {v(O+2*j+1)}")
```

```python
from asmlib import *
import struct
def f2u(x): return struct.unpack("<I", struct.pack("<f", x))[0]
def hexf(x): return f"{f2u(x):#x}"

WS_Q   = 0x000000
WS_K   = 0x200000
WS_V   = 0x400000
WS_HS  = 0x600000
WS_X1  = 0x800000
WS_O   = 0xA00000
WS_U   = 0xC00000
WS_ST  = 0x1400000
WS_CSA = 0x1600000
WS_CS3 = 0x1440000
WS_ST1 = 0x1480000
WS_S   = 0x1500000
WS_DBG = 0x2000000
WS_SIZE = 0x10000000

LOG2E = 1.4426950408889634
QSCALE = 0.25 * LOG2E
GK1 = -2.0 * 0.7978845608028654 * LOG2E
GK2 = GK1 * 0.044715
EPS = 1e-5

def srd(A, base, ptr, size):
    A(f"s_mov_b32 s{base}, s{ptr}")
    A(f"s_mov_b32 s{base+1}, s{ptr+1}")
    A(f"s_mov_b32 s{base+2}, {size:#x}")
    A(f"s_mov_b32 s{base+3}, 0x20000")

def gelu_regs(A, regs, tmp, vKP, vONE):
    n = len(regs)
    P = [tmp + 2*i for i in range(n)]
    for i, x in enumerate(regs): A(f"v_pk_mul_f32 {v(P[i],2)}, {v(x,2)}, {v(x,2)}")
    for i, x in enumerate(regs): A(f"v_pk_fma_f32 {v(P[i],2)}, {v(P[i],2)}, {v(vKP,2)}, {v(vKP,2)} op_sel:[0,0,1] op_sel_hi:[1,0,1]")
    for i, x in enumerate(regs): A(f"v_pk_mul_f32 {v(P[i],2)}, {v(P[i],2)}, {v(x,2)}")
    for i, x in enumerate(regs):
        A(f"v_exp_f32 {v(P[i])}, {v(P[i])}"); A(f"v_exp_f32 {v(P[i]+1)}, {v(P[i]+1)}")
    if n == 1: A("s_nop 0")
    for i, x in enumerate(regs): A(f"v_pk_add_f32 {v(P[i],2)}, {v(P[i],2)}, {v(vONE,2)}")
    for i, x in enumerate(regs):
        A(f"v_rcp_f32 {v(P[i])}, {v(P[i])}"); A(f"v_rcp_f32 {v(P[i]+1)}, {v(P[i]+1)}")
    if n == 1: A("s_nop 0")
    for i, x in enumerate(regs): A(f"v_pk_mul_f32 {v(x,2)}, {v(x,2)}, {v(P[i],2)}")

def colsum_partial(A, srdname, sOff, sStride, vLane4, vbuf, vC10, vC01, vout):
    for j in range(32):
        A(f"buffer_load_dword {v(vbuf+j)}, {v(vLane4)}, {srdname}, {sOff} offen")
        if j < 31: A(f"s_add_u32 {sOff}, {sOff}, {sStride}")

def colsum_reduce(A, vbuf, vC10, vC01, vout):
    a = [vout, vout+1, vout+2, vout+3]
    for i in range(4): A(f"v_mov_b32 {v(a[i])}, 0")
    for j in range(32):
        A(f"v_dot2_f32_bf16 {v(a[(j%2)*2])}, {v(vbuf+j)}, {v(vC10)}, {v(a[(j%2)*2])}")
        A(f"v_dot2_f32_bf16 {v(a[(j%2)*2+1])}, {v(vbuf+j)}, {v(vC01)}, {v(a[(j%2)*2+1])}")
    A("s_nop 2")
    A(f"v_add_f32 {v(a[0])}, {v(a[0])}, {v(a[2])}")
    A(f"v_add_f32 {v(a[1])}, {v(a[1])}, {v(a[3])}")

def wave_reduce_lane63(A, regs):
    steps = ["row_shr:1 row_mask:0xf bank_mask:0xf", "row_shr:2 row_mask:0xf bank_mask:0xf", "row_shr:4 row_mask:0xf bank_mask:0xf",
             "row_shr:8 row_mask:0xf bank_mask:0xf", "row_bcast:15 row_mask:0xa bank_mask:0xf", "row_bcast:31 row_mask:0xc bank_mask:0xf"]
    for st in steps:
        for r in regs:
            A(f"v_add_f32_dpp {v(r)}, {v(r)}, {v(r)} {st}")
        if len(regs) < 3: A("s_nop 1")

OPTS = dict(codepf=True, wt="", ld="", persist=False)
def code_prefetch(A, first_label, sI, vLane, vT, vDummy, sT):
    l = A.uid("cpf")
    A(f"s_getpc_b64 s[{sT}:{sT+1}]")
    A.label(l)
    A(f"s_sub_u32 s{sT}, s{sT}, {l}-{first_label}")
    A(f"s_subb_u32 s{sT+1}, s{sT+1}, 0")
    A(f"s_lshl_b32 s{sT+2}, {sI}, 13")
    A(f"v_lshlrev_b32 {v(vT)}, 7, {v(vLane)}")
    A(f"v_add_u32 {v(vT)}, s{sT+2}, {v(vT)}")
    A(f"v_mov_b32 {v(vT+1)}, text_end_marker-{first_label}")
    A(f"v_cmp_lt_u32 vcc, {v(vT)}, {v(vT+1)}")
    A(f"s_and_saveexec_b64 s[{sT+4}:{sT+5}], vcc")
    e = A.uid("cpf")
    A(f"s_cbranch_execz {e}")
    A(f"global_load_dword {v(vDummy)}, {v(vT)}, s[{sT}:{sT+1}]")
    A.label(e)
    A(f"s_mov_b64 exec, s[{sT+4}:{sT+5}]")

def colsum4_issue(A, srdname, sOff, sStride4, vOff, vbuf):
    for j in range(8):
        A(f"buffer_load_dwordx4 {v(vbuf+4*j,4)}, {v(vOff)}, {srdname}, {sOff} offen")
        if j < 7: A(f"s_add_u32 {sOff}, {sOff}, {sStride4}")

def colsum4_reduce(A, vbuf, vC10, vC01, acc, vLane, vT, sM):
    for i in range(8): A(f"v_mov_b32 {v(acc+i)}, 0")
    A(f"v_lshrrev_b32 {v(vT)}, 4, {v(vLane)}")
    for g in range(1, 4): A(f"v_cmp_eq_u32 s[{sM+2*(g-1)}:{sM+2*(g-1)+1}], {g}, {v(vT)}")
    for j in range(8):
        for q in range(4):
            A(f"v_dot2_f32_bf16 {v(acc+2*q)}, {v(vbuf+4*j+q)}, {v(vC10)}, {v(acc+2*q)}")
            A(f"v_dot2_f32_bf16 {v(acc+2*q+1)}, {v(vbuf+4*j+q)}, {v(vC01)}, {v(acc+2*q+1)}")
    A("s_nop 2")
    for sw in ("v_permlane16_swap_b32", "v_permlane32_swap_b32"):
        for i in range(8): A(f"v_mov_b32 {v(vT+i)}, {v(acc+i)}")
        for i in range(8): A(f"{sw} {v(acc+i)}, {v(vT+i)}")
        A("s_nop 0")
        for i in range(8): A(f"v_add_f32 {v(acc+i)}, {v(acc+i)}, {v(vT+i)}")
    for g in range(1, 4):
        A(f"v_cndmask_b32 {v(acc)}, {v(acc)}, {v(acc+2*g)}, s[{sM+2*(g-1)}:{sM+2*(g-1)+1}]")
        A(f"v_cndmask_b32 {v(acc+1)}, {v(acc+1)}, {v(acc+2*g+1)}, s[{sM+2*(g-1)}:{sM+2*(g-1)+1}]")

def apply_ln_block(A, acc, cs, P, tmp):
    def mul(j): A(f"v_pk_mul_f32 {v(tmp+2*(j%4),2)}, {v(cs+2*j,2)}, {v(P,2)} op_sel:[0,1] op_sel_hi:[1,1]")
    def fma(j): A(f"v_pk_fma_f32 {v(acc+2*j,2)}, {v(acc+2*j,2)}, {v(P,2)}, {v(tmp+2*(j%4),2)} op_sel_hi:[1,0,1]")
    for j in range(4): mul(j)
    for j in range(8):
        fma(j)
        if j + 4 < 8: mul(j + 4)

def colsum8_issue(A, srdname, sOff, sStride8, vOff, vbuf):
    for j in range(4):
        A(f"buffer_load_dwordx4 {v(vbuf+4*j,4)}, {v(vOff)}, {srdname}, {sOff} offen")
        if j < 3: A(f"s_add_u32 {sOff}, {sOff}, {sStride8}")

def colsum8_reduce(A, vbuf, vC10, vC01, acc, vLane, vT, sM):
    for i in range(8): A(f"v_mov_b32 {v(acc+i)}, 0")
    A(f"v_bfe_u32 {v(vT)}, {v(vLane)}, 3, 2")
    for g in range(1, 4): A(f"v_cmp_eq_u32 s[{sM+2*(g-1)}:{sM+2*(g-1)+1}], {g}, {v(vT)}")
    for j in range(4):
        for q in range(4):
            A(f"v_dot2_f32_bf16 {v(acc+2*q)}, {v(vbuf+4*j+q)}, {v(vC10)}, {v(acc+2*q)}")
            A(f"v_dot2_f32_bf16 {v(acc+2*q+1)}, {v(vbuf+4*j+q)}, {v(vC01)}, {v(acc+2*q+1)}")
    A("s_nop 2")
    for i in range(8): A(f"v_add_f32_dpp {v(acc+i)}, {v(acc+i)}, {v(acc+i)} row_ror:8 row_mask:0xf bank_mask:0xf")
    for sw in ("v_permlane16_swap_b32", "v_permlane32_swap_b32"):
        for i in range(8): A(f"v_mov_b32 {v(vT+i)}, {v(acc+i)}")
        for i in range(8): A(f"{sw} {v(acc+i)}, {v(vT+i)}")
        A("s_nop 0")
        for i in range(8): A(f"v_add_f32 {v(acc+i)}, {v(acc+i)}, {v(vT+i)}")
    for g in range(1, 4):
        A(f"v_cndmask_b32 {v(acc)}, {v(acc)}, {v(acc+2*g)}, s[{sM+2*(g-1)}:{sM+2*(g-1)+1}]")
        A(f"v_cndmask_b32 {v(acc+1)}, {v(acc+1)}, {v(acc+2*g+1)}, s[{sM+2*(g-1)}:{sM+2*(g-1)+1}]")

WS_FLG = 0x1A00000
F_A, F_A2, F_X, F_O, F_U, F_W = (WS_FLG + i * 0x1000 for i in range(6))
L_G = 133648

def load_nonce(A, sdst, vtmp):
    A(f"v_mov_b32 {v(vtmp)}, {L_G}"); A(f"ds_read_b32 {v(vtmp)}, {v(vtmp)}"); A("s_waitcnt lgkmcnt(0)")
    A(f"v_readfirstlane_b32 {sdst}, {v(vtmp)}"); A("s_nop 3")

def poll_flags(A, vAddr, srdWS, sG, vtmp, lanes, scount="s57", sexec="s[58:59]", loads=1):
    if loads == 1: lanes = [lanes]
    rt = A.uid("poll"); ok = A.uid("poll")
    A(f"s_mov_b64 {sexec}, exec")
    A(f"s_mov_b32 {scount}, 0x40000")
    A.label(rt)
    for k in range(loads):
        A(f"s_mov_b32 exec_lo, {lanes[k] & 0xffffffff:#x}"); A(f"s_mov_b32 exec_hi, {lanes[k] >> 32:#x}")
        A(f"buffer_load_dword {v(vtmp+k)}, {v(vAddr+k)}, {srdWS}, 0 offen sc0 sc1")
    A("s_waitcnt vmcnt(0)")
    for k in range(loads):
        A(f"s_mov_b32 exec_lo, {lanes[k] & 0xffffffff:#x}"); A(f"s_mov_b32 exec_hi, {lanes[k] >> 32:#x}")
        A(f"v_cmp_ne_u32 vcc, {sG}, {v(vtmp+k)}")
        if k < loads - 1:
            nx = A.uid("poll")
            A(f"s_cbranch_vccnz {rt}_again")
    A(f"s_cbranch_vccz {ok}")
    A.label(f"{rt}_again")
    A(f"s_sub_u32 {scount}, {scount}, 1"); A(f"s_cmp_eq_u32 {scount}, 0"); A(f"s_cbranch_scc1 {ok}")
    A("s_sleep 1")
    A(f"s_branch {rt}")
    A.label(ok)
    A(f"s_mov_b64 exec, {sexec}")

def publish_flag(A, sOff, srdWS, sG, vtmp):
    A("s_mov_b64 s[58:59], exec"); A("s_mov_b64 exec, 1")
    A(f"v_mov_b32 {v(vtmp)}, {sG}"); A(f"v_mov_b32 {v(vtmp+1)}, 0")
    A(f"buffer_store_dword {v(vtmp)}, {v(vtmp+1)}, {srdWS}, {sOff} offen sc0 sc1")
    A("s_mov_b64 exec, s[58:59]")

def lds_sync(A, nwaves, word, vA=10, vB=11, s="s56"):
    lp = A.uid("ls")
    A(f"v_mov_b32 {v(vA)}, {word}"); A(f"v_mov_b32 {v(vB)}, 1")
    A("s_mov_b64 s[58:59], exec"); A("s_mov_b64 exec, 1")
    A(f"ds_add_u32 {v(vA)}, {v(vB)}")
    A("s_mov_b64 exec, s[58:59]")
    ex = A.uid("ls")
    A("s_mov_b32 s57, 0x400000")
    A.label(lp)
    A(f"ds_read_b32 {v(vB)}, {v(vA)}"); A("s_waitcnt lgkmcnt(0)")
    A(f"v_readfirstlane_b32 {s}, {v(vB)}"); A("s_sub_u32 s57, s57, 1"); A("s_cmp_eq_u32 s57, 0"); A(f"s_cbranch_scc1 {ex}")
    A(f"s_cmp_lt_u32 {s}, {nwaves}"); A(f"s_cbranch_scc1 {lp}")
    A.label(ex)
```

```python
from common import *

WS_W2F = 0x1700000
WS_WOF = 0x1780000
WS_W4F = 0x1800000

class SegD:
    def __init__(self, xbase, wbase, nks, ks0, nsteps, acc, rot=None):
        self.xbase, self.wbase, self.nks, self.ks0, self.nsteps, self.acc = xbase, wbase, nks, ks0, nsteps, acc
        self.rot = rot

def gemm64d(A, segs, P, srdWS, sRT, sCT, vL16, vOff, vR, sT, pre_hook=None, P0=3, mid_hook=None):
    sX0, sX1, sW0, sW1, sTmp = [f"s{sT+i}" for i in range(5)]
    steps = [(si, j) for si, sg in enumerate(segs) for j in range(sg.nsteps)]
    T = len(steps)
    cur = [-1]
    def seg_init(si):
        sg = segs[si]
        L = []
        for (dst0, dst1, tile, base) in ((sX0, sX1, sRT, sg.xbase), (sW0, sW1, sCT, sg.wbase)):
            L += [f"s_lshl_b32 {dst0}, {tile}, 1", f"s_mul_i32 {dst0}, {dst0}, {sg.nks}", f"s_add_u32 {dst0}, {dst0}, {sg.ks0}",
                  f"s_lshl_b32 {dst0}, {dst0}, 10", f"s_add_u32 {dst0}, {dst0}, {base:#x}", f"s_add_u32 {dst1}, {dst0}, {sg.nks*1024:#x}"]
        return L
    sK = f"s{sT+5}"
    def units(t):
        si, j = steps[t]
        sg = segs[si]
        pre = []
        if si != cur[0]:
            pre = seg_init(si); cur[0] = si
            pre += [f"s_lshl_b32 {sK}, {sg.rot}, 10" if sg.rot else f"s_mov_b32 {sK}, 0"]
        else:
            pre = [f"s_add_u32 {sK}, {sK}, 1024", f"s_cmp_eq_u32 {sK}, {sg.nsteps*1024}", f"s_cselect_b32 {sK}, 0, {sK}"]
        pre += [f"v_add_u32 {v(vOff)}, {sK}, {v(vL16)}"]
        slot = t % P; r = vR + 16 * slot
        U = [pre + [f"buffer_load_dwordx4 {v(r+8,4)}, {v(vOff)}, {srdWS}, {sW0} offen {OPTS['ld']}"],
             [f"buffer_load_dwordx4 {v(r,4)}, {v(vOff)}, {srdWS}, {sX0} offen {OPTS['ld']}"],
             [f"buffer_load_dwordx4 {v(r+4,4)}, {v(vOff)}, {srdWS}, {sX1} offen {OPTS['ld']}"],
             [f"buffer_load_dwordx4 {v(r+12,4)}, {v(vOff)}, {srdWS}, {sW1} offen {OPTS['ld']}"]]
        return U
    first = set()
    def mf(t):
        si, j = steps[t]; sg = segs[si]; r = vR + 16 * (t % P)
        L = []
        for (b, cb) in ((0,0),(1,0),(0,1),(1,1)):
            d = v(sg.acc + 16*(2*b+cb), 16)
            c = d if (sg.acc in first) else "0"
            L.append(f"v_mfma_f32_32x32x16_bf16 {d}, {v(r+8+4*cb,4)}, {v(r+4*b,4)}, {c}")
        first.add(sg.acc)
        return L
    issued = 0
    P0 = min(P0, P, T)
    A.stamp(0)
    for t in range(P0):
        for u in units(t):
            for x in u: A(x)
        issued += 1
    A.stamp(1)
    extra_after = issued
    extra = pre_hook() if pre_hook else 0
    if mid_hook: mid_hook()
    def nafter(step):
        n = 4 * (issued - (step + 1))
        if step < extra_after: n += extra
        return n
    for t in range(T):
        if t == T // 2: A.stamp(3)
        A(f"s_waitcnt vmcnt({min(63, nafter(t))})")
        if t == 0: A.stamp(2)
        M = mf(t)
        U = []; n_new = 0
        while issued < T and issued <= t - 1 + P and n_new < 2:
            U += units(issued); issued += 1; n_new += 1
        per = (len(U) + 3) // 4
        for k in range(4):
            A(M[k])
            for u in U[k*per:(k+1)*per]:
                for x in u: A(x)

def relayout_unit(A, srdW, sRowOff, srdWS, sDst0, sDst1, order, ldsbase_sgpr, vLane, vT, wstride=1024):
    t0, t1, vWg, va, f = vT, vT+1, vT+2, vT+3, vT+4
    va0, va1, f = vT+3, vT+4, vT+6
    l = vLane
    A(f"v_bfe_u32 {v(t0)}, {v(l)}, 4, 1"); A(f"v_lshlrev_b32 {v(t0)}, 2, {v(t0)}")
    A(f"v_and_b32 {v(t1)}, 7, {v(l)}"); A(f"v_xor_b32 {v(t0)}, {v(t0)}, {v(t1)}"); A(f"v_lshlrev_b32 {v(t0)}, 4, {v(t0)}")
    A(f"v_lshrrev_b32 {v(t1)}, 3, {v(l)}"); A(f"v_mul_u32_u24 {v(t1)}, {wstride}, {v(t1)}"); A(f"v_add_u32 {v(vWg)}, {v(t1)}, {v(t0)}")
    A(f"v_bfe_u32 {v(t0)}, {v(l)}, 4, 1"); A(f"v_lshlrev_b32 {v(t0)}, 1, {v(t0)}")
    A(f"v_bfe_u32 {v(t1)}, {v(l)}, 1, 1"); A(f"v_add_u32 {v(t0)}, {v(t0)}, {v(t1)}")
    A(f"v_bfe_u32 {v(t1)}, {v(l)}, 3, 1"); A(f"v_lshlrev_b32 {v(t1)}, 2, {v(t1)}")
    A(f"v_xor_b32 {v(t0)}, {v(t0)}, {v(t1)}"); A(f"v_lshlrev_b32 {v(t0)}, 4, {v(t0)}")
    A(f"v_and_b32 {v(t1)}, 1, {v(l)}"); A(f"v_lshl_add_u32 {v(t0)}, {v(t1)}, 3, {v(t0)}")
    A(f"v_add_u32 {v(t0)}, {ldsbase_sgpr}, {v(t0)}")
    sh = 3 if order == 'nat' else 2
    A(f"v_lshrrev_b32 {v(t1)}, 5, {v(l)}"); A(f"v_lshlrev_b32 {v(t1)}, {sh}, {v(t1)}")
    A(f"v_bfe_u32 {v(va1)}, {v(l)}, 2, 2"); A(f"v_add_u32 {v(t1)}, {v(t1)}, {v(va1)}")
    A(f"v_lshl_add_u32 {v(va0)}, {v(t1)}, 7, {v(t0)}")
    A(f"v_xor_b32 {v(va1)}, 64, {v(va0)}")
    A(f"v_lshlrev_b32 {v(t0)}, 4, {v(l)}")
    return dict(vWg=vWg, va0=va0, va1=va1, f=f, l16=t0, es=(4 if order == 'nat' else 8))

def relayout_issue(A, R, srdW, sOff, sLds, ldsoff, sTmp, wstride=1024):
    A(f"s_add_u32 m0, {sLds}, {ldsoff}"); A(f"s_add_u32 {sTmp}, {sOff}, {8*wstride}")
    A(f"buffer_load_dwordx4 {v(R['vWg'])}, {srdW}, {sOff} offen lds")
    A(f"s_add_u32 m0, m0, 1024"); A("s_nop 0")
    A(f"buffer_load_dwordx4 {v(R['vWg'])}, {srdW}, {sTmp} offen lds")

def relayout_finish(A, R, srdWS, sD0, sD1, ldsoff, freg, wt=""):
    for cb in range(2):
        for e2 in range(2):
            A(f"ds_read_b64_tr_b16 {v(freg+4*cb+2*e2,2)}, {v(R['va0'] if cb == 0 else R['va1'])} offset:{ldsoff + R['es']*e2*128}")
    A("s_waitcnt lgkmcnt(0)")
    A(f"buffer_store_dwordx4 {v(freg,4)}, {v(R['l16'])}, {srdWS}, {sD0} offen {wt}")
    A(f"buffer_store_dwordx4 {v(freg+4,4)}, {v(R['l16'])}, {srdWS}, {sD1} offen {wt}")

def reduce_scatter_d(A, accs, sWave, ldsbase, vLane, vT, sync):
    region = 12288 * len(accs)
    A.stamp(4)
    A(f"s_mul_i32 s58, {sWave}, {region}"); A(f"s_add_u32 s58, s58, {ldsbase}")
    A(f"v_lshlrev_b32 {v(vT)}, 4, {v(vLane)}")
    A(f"v_add_u32 {v(vT+1)}, s58, {v(vT)}")
    end = A.uid("rs_end")
    labels = [A.uid("rs_w") for _ in range(4)]
    for w in range(1, 4):
        A(f"s_cmp_eq_u32 {sWave}, {w}"); A(f"s_cbranch_scc1 {labels[w]}")
    for w in range(4):
        if w: A.label(labels[w])
        for ai, acc in enumerate(accs):
            slot = 0
            for q in range(4):
                if q == w: continue
                for j in range(4):
                    A(f"ds_write_b128 {v(vT+1)}, {v(acc+16*q+4*j,4)} offset:{ai*12288 + slot*4096 + j*1024}")
                slot += 1
        A("s_waitcnt lgkmcnt(0)")
        sync(A)
        for ai, acc in enumerate(accs):
            tmpq = [q for q in range(4) if q != w]
            k = 0
            for u in range(4):
                if u == w: continue
                slot = w if w < u else w - 1
                off = ai*12288 + slot*4096
                A(f"v_add_u32 {v(vT+2+k)}, {((u - w) * region) & 0xffffffff:#x}, {v(vT+1)}")
                for j in range(4):
                    A(f"ds_read_b128 {v(acc+16*tmpq[k]+4*j,4)}, {v(vT+2+k)} offset:{off + j*1024}")
                k += 1
        for ai, acc in enumerate(accs):
            tmpq = [q for q in range(4) if q != w]
            A(f"s_waitcnt lgkmcnt({min(15, 12*(len(accs)-1-ai) + 4)})")
            for j in range(0, 16, 2):
                A(f"v_pk_add_f32 {v(acc+16*tmpq[0]+j,2)}, {v(acc+16*tmpq[0]+j,2)}, {v(acc+16*tmpq[1]+j,2)}")
            A(f"s_waitcnt lgkmcnt({min(15, 12*(len(accs)-1-ai))})")
            for j in range(0, 16, 2):
                A(f"v_pk_add_f32 {v(acc+16*tmpq[2]+j,2)}, {v(acc+16*tmpq[2]+j,2)}, {v(acc+16*w+j,2)}")
            for j in range(0, 16, 2):
                A(f"v_pk_add_f32 {v(acc+j,2)}, {v(acc+16*tmpq[0]+j,2)}, {v(acc+16*tmpq[2]+j,2)}")
        if w < 3: A(f"s_branch {end}")
    A.label(end)
    A.stamp(5)
```

```python
from asmlib import *
def _opts():
    import common
    return common.OPTS

STAGE = 32768
XOFF = 0
WOFF = 16384

def loader_setup(A, xmode, vXe, vXo, vW, vtmp, wstride):
    l = vtmp; t = vtmp + 1; t2 = vtmp + 2
    A(f"v_and_b32 {v(l)}, 63, v0")
    if xmode == 'row':
        A(f"v_lshrrev_b32 {v(t)}, 3, {v(l)}")
        A(f"v_lshlrev_b32 {v(t)}, 10, {v(t)}")
        A(f"v_lshrrev_b32 {v(t2)}, 4, {v(l)}")
        A(f"v_and_b32 {v(vXe)}, 7, {v(l)}")
        A(f"v_xor_b32 {v(vXe)}, {v(vXe)}, {v(t2)}")
        A(f"v_xor_b32 {v(vXo)}, 4, {v(vXe)}")
        A(f"v_lshl_add_u32 {v(vXe)}, {v(vXe)}, 4, {v(t)}")
        A(f"v_lshl_add_u32 {v(vXo)}, {v(vXo)}, 4, {v(t)}")
    else:
        A(f"v_lshlrev_b32 {v(vXe)}, 4, {v(l)}")
    A(f"v_lshrrev_b32 {v(t2)}, 4, {v(l)}")
    A(f"v_lshlrev_b32 {v(t)}, 2, {v(t2)}")
    A(f"v_and_b32 {v(vW)}, 15, {v(l)}")
    A(f"v_xor_b32 {v(vW)}, {v(vW)}, {v(t)}")
    A(f"v_lshlrev_b32 {v(vW)}, 4, {v(vW)}")
    A(f"v_mul_lo_u32 {v(t2)}, {v(t2)}, {wstride}")
    A(f"v_add_u32 {v(vW)}, {v(vW)}, {v(t2)}")

def loader_issue_chunk(A, xmode, stage, srdX, srdW, vXe, vXo, vW, sXoff, sWoff, sWstep, sLdsX, sLdsW, stmp):
    if xmode == 'row':
        for j in range(4):
            if j == 0:
                A(f"s_add_u32 m0, {sLdsX}, {stage*STAGE + XOFF}")
                A(f"s_mov_b32 {stmp}, {sXoff}")
            else:
                A(f"s_add_u32 m0, m0, 1024")
                A(f"s_add_u32 {stmp}, {stmp}, 8192")
            A(f"buffer_load_dwordx4 {v(vXe if j % 2 == 0 else vXo)}, {srdX}, {stmp} offen lds")
    else:
        A(f"s_add_u32 m0, {sLdsX}, {stage*STAGE + XOFF}")
        A("s_nop 0")
        for j in range(4):
            A(f"buffer_load_dwordx4 {v(vXe)}, {srdX}, {sXoff} offen offset:{j*1024} {_opts()['ld']} lds")
    for j in range(4):
        if j == 0:
            A(f"s_add_u32 m0, {sLdsW}, {stage*STAGE + WOFF}")
            A(f"s_mov_b32 {stmp}, {sWoff}")
        else:
            A(f"s_add_u32 m0, m0, 1024")
            A(f"s_add_u32 {stmp}, {stmp}, {sWstep}")
        A(f"buffer_load_dwordx4 {v(vW)}, {srdW}, {stmp} offen lds")

def compute_setup(A, xmode, sWr, sWc, vXa, vWa, vtmp):
    l = vtmp; t = vtmp + 1; t2 = vtmp + 2; t3 = vtmp + 3
    A(f"v_and_b32 {v(l)}, 63, v0")
    if xmode == 'row':
        A(f"v_and_b32 {v(t)}, 31, {v(l)}")
        A(f"v_lshrrev_b32 {v(t2)}, 5, {v(l)}")
        A(f"v_bfe_u32 {v(t3)}, {v(l)}, 1, 3")
        A(f"v_xor_b32 {v(t2)}, {v(t2)}, {v(t3)}")
        A(f"v_lshlrev_b32 {v(t)}, 7, {v(t)}")
        A(f"s_lshl_b32 s90, {sWr}, 13")
        A(f"v_add_u32 {v(t)}, s90, {v(t)}")
        for ks in range(4):
            A(f"v_xor_b32 {v(vXa+ks)}, {2*ks}, {v(t2)}")
            A(f"v_lshl_add_u32 {v(vXa+ks)}, {v(vXa+ks)}, 4, {v(t)}")
    else:
        A(f"v_lshlrev_b32 {v(t)}, 4, {v(l)}")
        A(f"s_lshl_b32 s90, {sWr}, 13")
        A(f"v_add_u32 {v(vXa)}, s90, {v(t)}")
    A(f"v_bfe_u32 {v(t)}, {v(l)}, 2, 2")
    A(f"v_lshrrev_b32 {v(t2)}, 5, {v(l)}")
    A(f"v_lshlrev_b32 {v(t2)}, {3 if xmode == 'row' else 2}, {v(t2)}")
    A(f"v_add_u32 {v(t2)}, {v(t2)}, {v(t)}")
    A(f"v_lshlrev_b32 {v(t2)}, 8, {v(t2)}")
    A(f"v_bfe_u32 {v(t3)}, {v(l)}, 4, 1")
    A(f"v_lshlrev_b32 {v(t3)}, 1, {v(t3)}")
    A(f"v_bfe_u32 {v(vWa)}, {v(l)}, 1, 1")
    A(f"v_add_u32 {v(t3)}, {v(t3)}, {v(vWa)}")
    A(f"s_lshl_b32 s90, {sWc}, 3")
    A(f"v_add_u32 {v(t3)}, s90, {v(t3)}")
    A(f"v_lshlrev_b32 {v(t)}, 2, {v(t)}")
    A(f"v_xor_b32 {v(t3)}, {v(t3)}, {v(t)}")
    A(f"v_xor_b32 {v(t)}, 4, {v(t3)}")
    A(f"v_and_b32 {v(l)}, 1, {v(l)}")
    A(f"v_lshl_add_u32 {v(t2)}, {v(l)}, 3, {v(t2)}")
    A(f"v_add_u32 {v(t2)}, {WOFF}, {v(t2)}")
    A(f"v_lshl_add_u32 {v(vWa)}, {v(t3)}, 4, {v(t2)}")
    A(f"v_lshl_add_u32 {v(vWa+1)}, {v(t)}, 4, {v(t2)}")

def frag_reads(A, xmode, ks, stage_off, vXa, vWa, fX, fW):
    for b in range(2):
        if xmode == 'row':
            A(f"ds_read_b128 {v(fX+4*b,4)}, {v(vXa+ks)} offset:{stage_off + b*4096}")
        else:
            A(f"ds_read_b128 {v(fX+4*b,4)}, {v(vXa)} offset:{stage_off + b*4096 + ks*1024}")
    estep = 4 if xmode == 'row' else 8
    for cb in range(2):
        for e2 in range(2):
            A(f"ds_read_b64_tr_b16 {v(fW+4*cb+2*e2,2)}, {v(vWa+cb)} offset:{stage_off + (16*ks + estep*e2)*256}")

def mfmas(A, acc, fX, fW, swap=False, first=False):
    for b in range(2):
        for cb in range(2):
            d = v(acc + 16*(2*b+cb), 16)
            c = "0" if first else d
            if not swap:
                A(f"v_mfma_f32_32x32x16_bf16 {d}, {v(fW+4*cb,4)}, {v(fX+4*b,4)}, {c}")
            else:
                A(f"v_mfma_f32_32x32x16_bf16 {d}, {v(fX+4*b,4)}, {v(fW+4*cb,4)}, {c}")


def frag_read_list(xmode, ks, stage_off, vXa, vWa, fX, fW):
    L = []
    estep = 4 if xmode == 'row' else 8
    def X(b):
        if xmode == 'row':
            return f"ds_read_b128 {v(fX+4*b,4)}, {v(vXa+ks)} offset:{stage_off + b*4096}"
        return f"ds_read_b128 {v(fX+4*b,4)}, {v(vXa)} offset:{stage_off + b*4096 + ks*1024}"
    def W(cb, e2):
        return f"ds_read_b64_tr_b16 {v(fW+4*cb+2*e2,2)}, {v(vWa+cb)} offset:{stage_off + (16*ks + estep*e2)*256}"
    return [W(0,0), W(0,1), X(0), X(1), W(1,0), W(1,1)]

def mfma_list(acc, fX, fW, swap=False, first=False):
    L = []
    for (b, cb) in ((0,0),(1,0),(0,1),(1,1)):
        d = v(acc + 16*(2*b+cb), 16)
        c = "0" if first else d
        if not swap: L.append(f"v_mfma_f32_32x32x16_bf16 {d}, {v(fW+4*cb,4)}, {v(fX+4*b,4)}, {c}")
        else: L.append(f"v_mfma_f32_32x32x16_bf16 {d}, {v(fX+4*b,4)}, {v(fW+4*cb,4)}, {c}")
    return L

def compute_loop(A, xmode, acc, vXa, vWa, f0, f1, swap=False, nchunk=8, hook=None, last_barrier=False):
    nx = 4 if xmode == 'row' else 1
    cur_hi = 0
    def set_hi(hi):
        nonlocal cur_hi
        if hi != cur_hi:
            d = (hi - cur_hi) * 65536
            for i in range(nx):
                A(f"v_add_u32 {v(vXa+i)}, {d & 0xffffffff:#x}, {v(vXa+i)}")
            for i in range(2):
                A(f"v_add_u32 {v(vWa+i)}, {d & 0xffffffff:#x}, {v(vWa+i)}")
            cur_hi = hi
    F = [f0, f1]
    A.stamp(1)
    A("s_barrier")
    A.stamp(2)
    for r in frag_read_list(xmode, 0, 0, vXa, vWa, F[0], F[0]+8): A(r)
    step = 0
    for ch in range(nchunk):
        for ks in range(4):
            cur = F[step % 2]; nxt = F[(step + 1) % 2]
            last = (ch == nchunk - 1 and ks == 3)
            M = mfma_list(acc, cur, cur + 8, swap, first=(step == 0))
            A("s_waitcnt lgkmcnt(0)")
            if ks < 3:
                R = frag_read_list(xmode, ks + 1, ((ch % 4) % 2) * 32768, vXa, vWa, nxt, nxt + 8)
                A(M[0]); A(R[0]); A(R[1]); A(M[1]); A(R[2]); A(R[3]); A(M[2]); A(R[4]); A(R[5]); A(M[3])
            else:
                A(M[0])
                if not last or last_barrier: A("s_barrier")
                if ch == 0: A.stamp(3)
                if ch == 3: A.stamp(4)
                if ch == 7: A.stamp(5)
                if not last:
                    st = (ch + 1) % 4
                    set_hi(st // 2)
                    R = frag_read_list(xmode, 0, (st % 2) * 32768, vXa, vWa, nxt, nxt + 8)
                    A(R[0]); A(R[1]); A(M[1]); A(R[2]); A(R[3]); A(M[2]); A(R[4]); A(R[5]); A(M[3])
                else:
                    A(M[1]); A(M[2]); A(M[3])
            if hook: hook(ch, ks)
            step += 1

def loader_loop(A, xmode, srdX, srdW, vXe, vXo, vW, sXbase, sWbase, sXadv, sWadv, sWstep, sLdsX, sLdsW, stmp, sRot, sXoff, sWoff,
                nchunk=8, hook=None, hook0=None, hook1=None, side=None, mid_issue=None, mid_finish=None, endinstr='s_endpgm', pre_x=None):
    def issue(ch):
        A(f"s_mul_i32 {sXoff}, {sRot}, {sXadv}"); A(f"s_add_u32 {sXoff}, {sXoff}, {sXbase}")
        A(f"s_mul_i32 {sWoff}, {sRot}, {sWadv}"); A(f"s_add_u32 {sWoff}, {sWoff}, {sWbase}")
        loader_issue_chunk(A, xmode, ch % 4, srdX, srdW, vXe, vXo, vW, sXoff, sWoff, sWstep, sLdsX, sLdsW, stmp)
        if ch + 1 < nchunk:
            A(f"s_add_u32 {sRot}, {sRot}, 1"); A(f"s_and_b32 {sRot}, {sRot}, {nchunk-1}")
    import common
    npro = common.OPTS.get('npro', 2)
    A.stamp(0)
    for c_ in range(npro): issue(c_)
    A.stamp(1)
    if hook0: hook0()
    A(f"s_waitcnt vmcnt({8*(npro-1)})")
    A.stamp(2)
    A("s_barrier")
    A.stamp(3)
    if hook1: hook1()
    for c_ in range(npro, 4): issue(c_)
    issued = 4
    def step(ch, ns):
        out = issued - (ch + 2)
        A(f"s_waitcnt vmcnt({min(63, 8*out + ns)})")
        if ch in (0, 3, 4, 5, 6): A.stamp({0: 4, 3: 5, 4: 6, 5: 7, 6: 8}[ch])
        A("s_barrier")
    ch = 0
    while issued < nchunk:
        step(ch, 0)
        issue(issued); issued += 1
        if hook: hook(ch)
        ch += 1
    ns = mid_issue() if mid_issue else 0
    for c2 in range(ch, nchunk - 1): step(c2, ns)
    if mid_finish:
        mid_finish()
        A("s_barrier")
    variants = side if side else [(None, None, None)]
    for vi, (sel, isf, fin) in enumerate(variants):
        lnext = A.uid("ld")
        if sel: sel(lnext)
        if isf: isf()
        if fin: fin()
        A(endinstr)
        A.label(lnext)
```

```python
from common import *
from gemm_core import *
from gemm64d import *

LDS_A = 131072 + 4096
L_ST, L_CS, L_NO = 131072, 133120, 133632
def gen_A(stamp=False, A=None):
    PS = OPTS['persist']
    if A is None: A = Asm()
    N = "kA"
    END = f"s_branch {N}_end" if PS else "s_endpgm"
    if not PS:
        A("s_cmp_ge_u32 s2, 256"); A(f"s_cbranch_scc1 {N}_done")
    A("s_load_dwordx4 s[4:7], s[0:1], 0")
    A("s_load_dwordx2 s[16:17], s[0:1], 32")
    A("s_load_dwordx2 s[18:19], s[0:1], 48")
    A("s_load_dwordx2 s[20:21], s[0:1], 72")
    A("s_load_dwordx2 s[22:23], s[0:1], 80")
    A("s_load_dwordx2 s[62:63], s[0:1], 40")
    A("s_memrealtime s[64:65]")
    A("s_and_b32 s24, s2, 7"); A("s_lshr_b32 s25, s2, 3")
    if OPTS['codepf']:
        lcp = A.uid(N)
        A("v_readfirstlane_b32 s46, v0"); A("s_nop 0"); A("s_cmp_lt_u32 s46, 448"); A(f"s_cbranch_scc1 {lcp}")
        A("v_and_b32 v2, 63, v0")
        code_prefetch(A, "kP_kernel" if PS else "kA_kernel", "s25", 2, 4, 20, 40)
        A.label(lcp)
    A("s_lshr_b32 s26, s24, 1"); A("s_lshl_b32 s26, s26, 2"); A("s_lshr_b32 s27, s25, 3"); A("s_add_u32 s26, s26, s27")
    A("s_and_b32 s27, s24, 1"); A("s_lshl_b32 s27, s27, 3"); A("s_and_b32 s28, s25, 7"); A("s_add_u32 s27, s27, s28")
    A("v_lshrrev_b32 v1, 6, v0"); A("v_and_b32 v2, 63, v0"); A("v_readfirstlane_b32 s33, v1")
    if OPTS.get('a_rot', 1) == 1:
        A("s_lshr_b32 s37, s25, 3"); A("s_lshl_b32 s37, s37, 1"); A("s_add_u32 s37, s37, s25"); A("s_and_b32 s37, s37, 7")
    elif OPTS.get('a_rot', 1) == 2:
        A("s_lshr_b32 s37, s25, 3"); A("s_add_u32 s37, s37, s25"); A("s_and_b32 s37, s37, 1"); A("s_lshl_b32 s37, s37, 2")
    else: A("s_mov_b32 s37, 0")
    A("s_cmp_lt_u32 s27, 12")
    A("s_movk_i32 s34, 1024"); A("s_cselect_b32 s34, 3072, s34")
    A("s_mov_b32 s14, 0x80000"); A("s_cselect_b32 s14, 0x180000, s14")
    A("s_cselect_b32 s35, 0, 12"); A("s_sub_u32 s35, s27, s35"); A("s_lshl_b32 s35, s35, 8")
    A("s_waitcnt lgkmcnt(0)")
    A("s_cmp_lt_u32 s27, 12")
    A("s_cselect_b32 s12, s6, s16"); A("s_cselect_b32 s13, s7, s17"); A("s_mov_b32 s15, 0x20000")
    srd(A, 8, 4, 0x200000)
    A("s_cmp_lt_u32 s33, 4"); A(f"s_cbranch_scc1 {N}_compute")
    A("s_sub_u32 s38, s33, 4")
    loader_setup(A, 'row', 8, 9, 10, 4, "s34")
    A("s_lshl_b32 s40, s26, 7"); A("s_lshl_b32 s41, s38, 5"); A("s_add_u32 s40, s40, s41"); A("s_lshl_b32 s40, s40, 10")
    A("s_lshl_b32 s41, s38, 4"); A("s_mul_i32 s41, s41, s34"); A("s_add_u32 s41, s41, s35")
    A("s_lshl_b32 s42, s34, 2"); A("s_lshl_b32 s43, s34, 6")
    A("s_lshl_b32 s44, s38, 12"); A("s_lshl_b32 s45, s38, 12")
    def sj_w3_issue():
        srd(A, 28, 22, WS_SIZE)
        srd(A, 52, 18, 0x1C0000)
        A("s_lshl_b32 s56, s27, 8"); A("s_lshl_b32 s57, s26, 5"); A("s_mul_i32 s57, s57, 3584"); A("s_add_u32 s57, s57, s56")
        A("v_lshrrev_b32 v12, 4, v2"); A("v_mul_u32_u24 v12, 3584, v12"); A("v_and_b32 v13, 15, v2"); A("v_lshl_add_u32 v12, v13, 4, v12")
        A("s_movk_i32 s56, 14336")
        colsum4_issue(A, "s[52:55]", "s57", "s56", 12, 16)
        return 8
    def sj_w3_finish():
        A("s_waitcnt vmcnt(0)")
        A("v_mov_b32 v4, 0x3f80"); A("v_mov_b32 v5, 0x3f800000")
        colsum4_reduce(A, 16, 4, 5, 48, 2, 56, 50)
        A("s_lshl_b32 s47, s27, 4"); A("s_add_u32 s47, s47, s26"); A("s_lshl_b32 s47, s47, 9"); A(f"s_add_u32 s47, s47, {WS_CS3:#x}")
        A("v_and_b32 v6, 15, v2"); A("v_lshrrev_b32 v7, 4, v2"); A("v_lshl_add_u32 v6, v6, 2, v7"); A("v_lshlrev_b32 v6, 3, v6")
        A(f"buffer_store_dwordx2 v[48:49], v6, s[28:31], s47 offen {OPTS['wt']}")
    def sj_relayout():
        le = A.uid(N); l2 = A.uid(N)
        A("s_cmp_eq_u32 s38, 3"); A(f"s_cbranch_scc1 {le}")
        srd(A, 28, 22, WS_SIZE)
        A("s_mul_i32 s56, s26, 16"); A("s_add_u32 s56, s56, s27")
        A("s_lshr_b32 s57, s56, 5"); A("s_and_b32 s58, s56, 31")
        A("s_lshl_b32 s59, s58, 14"); A("s_lshl_b32 s60, s57, 7"); A("s_add_u32 s59, s59, s60")
        A("s_lshl_b32 s60, s57, 6"); A("s_add_u32 s60, s60, s58"); A("s_lshl_b32 s60, s60, 10")
        A("s_lshl_b32 s56, s38, 11")
        A("s_cmp_eq_u32 s38, 2"); A(f"s_cbranch_scc1 {l2}")
        for (order, ptr, base, lab) in (('perm', 62, WS_W2F, None), ('nat', None, WS_WOF, l2)):
            if lab:
                A.label(lab)
                A("s_load_dwordx2 s[52:53], s[0:1], 16"); A("s_waitcnt lgkmcnt(0)"); A("s_mov_b32 s54, 0x80000"); A("s_mov_b32 s55, 0x20000")
            else: srd(A, 52, ptr, 0x80000)
            R = relayout_unit(A, None, None, None, None, None, order, "s56", 2, 12)
            relayout_issue(A, R, "s[52:55]", "s59", "s56", 0, "s57")
            A(f"s_add_u32 s60, s60, {base:#x}"); A("s_add_u32 s61, s60, 32768")
            A("s_waitcnt vmcnt(0)")
            relayout_finish(A, R, "s[28:31]", "s60", "s61", 0, 32, OPTS['wt'])
            if not lab: A(f"s_branch {le}")
        A.label(le)
    def cons_issue():
        srd(A, 28, 22, WS_SIZE)
        A("v_and_b32 v12, 31, v2"); A("v_lshlrev_b32 v12, 4, v12")
        A("s_lshl_b32 s56, s26, 7"); A("s_lshl_b32 s57, s38, 5"); A("s_add_u32 s56, s56, s57"); A("s_lshl_b32 s56, s56, 4"); A(f"s_add_u32 s56, s56, {WS_ST:#x}")
        A("buffer_load_dwordx4 v[16:19], v12, s[28:31], s56 offen sc0 sc1")
        A("v_and_b32 v13, 15, v2"); A("v_lshlrev_b32 v13, 4, v13"); A("v_lshrrev_b32 v14, 4, v2"); A("v_lshl_add_u32 v13, v14, 10, v13")
        A("s_lshl_b32 s56, s27, 14"); A("s_lshl_b32 s57, s38, 8"); A("s_add_u32 s56, s56, s57"); A(f"s_add_u32 s56, s56, {WS_CSA:#x}")
        for j in range(4):
            A(f"buffer_load_dwordx4 {v(20+4*j,4)}, v13, s[28:31], s56 offen sc0 sc1")
            if j < 3: A("s_add_u32 s56, s56, 4096")
        return 5
    def cons_finish():
        rt = A.uid(N); ok = A.uid(N)
        A(f"v_mov_b32 v40, {L_NO}"); A("ds_read_b64 v[42:43], v40")
        A("s_mov_b32 s61, 0x20000")
        A.label(rt)
        A("s_waitcnt vmcnt(0) lgkmcnt(0)")
        A("v_xor_b32 v40, v42, v19")
        for j in range(4):
            A(f"v_xor_b32 v41, v43, {v(20+4*j+2)}"); A("v_or_b32 v40, v40, v41")
        A("v_cmp_ne_u32 vcc, 0, v40")
        A(f"s_cbranch_vccz {ok}")
        A("s_sub_u32 s61, s61, 1"); A("s_cmp_eq_u32 s61, 0"); A(f"s_cbranch_scc1 {ok}")
        cons_issue()
        A(f"s_branch {rt}")
        A.label(ok)
        A("v_add_f32 v20, v20, v24"); A("v_add_f32 v21, v21, v25"); A("v_add_f32 v28, v28, v32"); A("v_add_f32 v29, v29, v33")
        A("v_add_f32 v20, v20, v28"); A("v_add_f32 v21, v21, v29")
        for sw in ("v_permlane16_swap_b32", "v_permlane32_swap_b32"):
            A("v_mov_b32 v22, v20"); A("v_mov_b32 v23, v21"); A("s_nop 1")
            A(f"{sw} v20, v22"); A(f"{sw} v21, v23"); A("s_nop 0")
            A("v_add_f32 v20, v20, v22"); A("v_add_f32 v21, v21, v23")
        A("s_lshl_b32 s56, s38, 9"); A(f"s_add_u32 s56, s56, {L_ST}"); A("v_add_u32 v12, s56, v12")
        A("v_and_b32 v13, 15, v2"); A("v_lshlrev_b32 v13, 3, v13"); A("s_lshl_b32 s56, s38, 7"); A(f"s_add_u32 s56, s56, {L_CS}"); A("v_add_u32 v13, s56, v13")
        A("ds_write_b128 v12, v[16:19]"); A("ds_write_b64 v13, v[20:21]")
        A("s_waitcnt lgkmcnt(0)")
    def sel0(lelse):
        A("s_cmp_lg_u32 s38, 0"); A(f"s_cbranch_scc1 {lelse}")
    loader_loop(A, 'row', "s[8:11]", "s[12:15]", 8, 9, 10, "s40", "s41", "128", "s43", "s42", "s44", "s45", "s46", "s37", "s47", "s48",
                side=[(sel0, sj_w3_issue, sj_w3_finish), (None, sj_relayout, None)],
                mid_issue=cons_issue, mid_finish=cons_finish, endinstr=END)
    A.label(f"{N}_compute")
    srd(A, 28, 22, WS_SIZE)
    A.stamp(0)
    A("v_lshlrev_b32 v3, 2, v2")
    A("s_or_b32 s64, s64, 1")
    l0 = A.uid(N); l1 = A.uid(N)
    A("s_cmp_lg_u32 s33, 0"); A(f"s_cbranch_scc1 {l1}")
    A("v_mov_b32 v4, s64"); A("s_mov_b64 s[48:49], exec"); A("s_mov_b64 exec, 1")
    A("s_cmp_lg_u32 s27, 0"); A(f"s_cbranch_scc1 {l0}")
    A("s_lshl_b32 s46, s26, 2"); A("v_mov_b32 v5, s46"); A("global_store_dword v5, v4, s[20:21] sc0 sc1")
    A.label(l0)
    l0b = A.uid(N)
    A("s_cmp_lg_u32 s26, 0"); A(f"s_cbranch_scc1 {l0b}")
    A("s_lshl_b32 s46, s27, 2"); A("s_add_u32 s46, s46, 64"); A("v_mov_b32 v5, s46"); A("global_store_dword v5, v4, s[20:21] sc0 sc1")
    A.label(l0b)
    if PS:
        l0c = A.uid(N)
        A("s_cmp_lg_u32 s2, 0"); A(f"s_cbranch_scc1 {l0c}")
        A("v_mov_b32 v5, 128"); A("global_store_dword v5, v4, s[20:21] sc0 sc1")
        A.label(l0c)
    A("s_mov_b64 exec, s[48:49]")
    A.label(l1)
    def nonce_check():
        rt = A.uid(N); ok = A.uid(N)
        A("s_mov_b32 s46, 0x20000")
        A("s_add_u32 s47, s27, 16")
        A.label(rt)
        A("v_readlane_b32 s58, v49, s26"); A("v_readlane_b32 s59, v49, s47"); A("v_readlane_b32 s60, v49, 32")
        A("s_nop 3")
        A("s_cmp_eq_u32 s58, 0"); A("s_cselect_b32 s50, 1, 0"); A("s_cmp_eq_u32 s59, 0"); A("s_cselect_b32 s50, 1, s50")
        if PS: A("s_cmp_eq_u32 s60, 0"); A("s_cselect_b32 s50, 1, s50")
        A("s_cmp_eq_u32 s50, 0"); A(f"s_cbranch_scc1 {ok}")
        A("s_sub_u32 s46, s46, 1"); A("s_cmp_eq_u32 s46, 0"); A(f"s_cbranch_scc1 {ok}")
        A("global_load_dword v49, v3, s[20:21] sc0 sc1"); A("s_waitcnt vmcnt(0)")
        A(f"s_branch {rt}")
        A.label(ok)
    SB = 152
    def service_issue():
        lx = A.uid(N); le = A.uid(N)
        A("s_cmp_ge_u32 s33, 2"); A(f"s_cbranch_scc1 {lx}")
        A("s_lshl_b32 s47, s26, 5"); A("s_mul_i32 s47, s47, s34"); A("s_add_u32 s47, s47, s35"); A("s_lshl_b32 s46, s33, 7"); A("s_add_u32 s47, s47, s46")
        A("v_lshrrev_b32 v6, 3, v2"); A("v_mul_lo_u32 v6, v6, s34"); A("v_and_b32 v7, 7, v2"); A("v_lshl_add_u32 v6, v7, 4, v6")
        A("s_lshl_b32 s46, s34, 3")
        colsum8_issue(A, "s[12:15]", "s47", "s46", 6, SB)
        A(f"s_branch {le}")
        A.label(lx)
        A("s_lshl_b32 s61, s26, 7"); A("s_lshl_b32 s46, s27, 3"); A("s_add_u32 s61, s61, s46")
        A("s_sub_u32 s46, s33, 2"); A("s_lshl_b32 s46, s46, 2"); A("s_add_u32 s61, s61, s46")
        A("s_lshl_b32 s46, s61, 10")
        A("v_lshlrev_b32 v6, 4, v2")
        for j in range(4):
            A(f"buffer_load_dwordx4 {v(SB+4*j,4)}, v6, s[8:11], s46 offen offset:{j*1024}")
        A.label(le)
    def w3_issue():
        le = A.uid(N)
        A("s_cmp_lg_u32 s33, 1"); A(f"s_cbranch_scc1 {le}")
        srd(A, 40, 18, 0x1C0000)
        A("s_movk_i32 s44, 3584"); A("s_lshl_b32 s45, s27, 8"); A("s_lshl_b32 s47, s26, 5"); A("s_mul_i32 s47, s47, s44"); A("s_add_u32 s47, s47, s45")
        A("v_lshrrev_b32 v48, 4, v2"); A("v_mul_u32_u24 v48, 3584, v48"); A("v_and_b32 v49, 15, v2"); A("v_lshl_add_u32 v48, v49, 4, v48")
        A("s_movk_i32 s44, 14336")
        colsum4_issue(A, "s[40:43]", "s47", "s44", 48, SB)
        A.label(le)
    A.label(f"{N}_w1")
    def service0_compute():
        le = A.uid(N); l1 = A.uid(N)
        A("s_cmp_ge_u32 s33, 2"); A(f"s_cbranch_scc1 {le}")
        A("s_waitcnt vmcnt(0)")
        A("s_cmp_lg_u32 s33, 0"); A(f"s_cbranch_scc1 {l1}")
        A("global_load_dword v49, v3, s[20:21] sc0 sc1")
        A.label(l1)
        A("v_mov_b32 v4, 0x3f80"); A("v_mov_b32 v5, 0x3f800000")
        colsum8_reduce(A, SB, 4, 5, 184, 2, 192, 50)
        A.label(le)
    def nonce_store():
        le = A.uid(N)
        A("s_cmp_lg_u32 s33, 0"); A(f"s_cbranch_scc1 {le}")
        A("s_waitcnt vmcnt(0)")
        nonce_check()
        A("v_mov_b32 v4, s58"); A("v_mov_b32 v5, s59"); A(f"v_mov_b32 v6, {L_NO}"); A("ds_write_b64 v6, v[4:5]")
        if PS:
            A("v_mov_b32 v4, s60"); A(f"v_mov_b32 v6, {L_G}"); A("ds_write_b32 v6, v4")
        A.label(le)
    def service01_store():
        le = A.uid(N)
        A("s_cmp_ge_u32 s33, 2"); A(f"s_cbranch_scc1 {le}")
        A("v_mov_b32 v186, s59"); A("v_mov_b32 v187, s59")
        A("s_lshl_b32 s47, s27, 4"); A("s_add_u32 s47, s47, s26"); A("s_lshl_b32 s47, s47, 10"); A(f"s_add_u32 s47, s47, {WS_CSA:#x}")
        A("s_lshl_b32 s46, s33, 9"); A("s_add_u32 s47, s47, s46")
        A("v_and_b32 v6, 7, v2"); A("v_bfe_u32 v7, v2, 3, 2"); A("v_lshl_add_u32 v6, v6, 2, v7"); A("v_lshlrev_b32 v6, 4, v6")
        A("s_mov_b32 exec_hi, 0")
        A("buffer_store_dwordx4 v[184:187], v6, s[28:31], s47 offen sc0 sc1")
        A("s_mov_b32 exec_hi, -1")
        A.label(le)
    def read_nonces():
        A(f"v_mov_b32 v52, {L_NO}"); A("ds_read_b64 v[54:55], v52"); A("s_waitcnt lgkmcnt(0)")
        A("v_readfirstlane_b32 s58, v54"); A("v_readfirstlane_b32 s59, v55")
    def service23_compute():
        le = A.uid(N)
        A("s_cmp_lt_u32 s33, 2"); A(f"s_cbranch_scc1 {le}")
        A("s_waitcnt vmcnt(0)")
        S0, S1, O0, VR = 168, 172, 176, 192
        A("v_mov_b32 v4, 0x3f803f80")
        for j in range(8): A(f"v_mov_b32 {v(S0+j)}, 0")
        for q in range(4):
            for j in range(4):
                A(f"v_dot2_f32_bf16 {v(S0+j)}, {v(SB+4*j+q)}, v4, {v(S0+j)}")
                A(f"v_dot2_f32_bf16 {v(S1+j)}, {v(SB+4*j+q)}, {v(SB+4*j+q)}, {v(S1+j)}")
        A("s_nop 2")
        wave_reduce_lane63(A, list(range(S0, S0 + 8)))
        A(f"v_mov_b32 v5, {hexf(EPS)}")
        for j in range(4): A(f"v_mul_f32 {v(O0+4*j)}, {hexf(1/512)}, {v(S0+j)}")
        for j in range(4): A(f"v_mul_f32 {v(VR+j)}, {hexf(1/512)}, {v(S1+j)}")
        for j in range(4): A(f"v_fma_f32 {v(VR+j)}, -{v(O0+4*j)}, {v(O0+4*j)}, {v(VR+j)}")
        for j in range(4): A(f"v_max_f32 {v(VR+j)}, 0, {v(VR+j)}")
        for j in range(4): A(f"v_add_f32 {v(O0+1+4*j)}, v5, {v(VR+j)}")
        for j in range(4): A(f"v_rsq_f32 {v(O0+1+4*j)}, {v(O0+1+4*j)}")
        for j in range(4): A(f"v_mul_f32 {v(O0+2+4*j)}, {v(O0+1+4*j)}, {v(O0+1+4*j)}")
        for j in range(4): A(f"v_fma_f32 {v(O0+2+4*j)}, {v(O0+2+4*j)}, {v(VR+j)}, v5")
        for j in range(4): A(f"v_rsq_f32 {v(O0+2+4*j)}, {v(O0+2+4*j)}")
        A("s_nop 0")
        for j in range(4): A(f"v_mul_f32 {v(O0+2+4*j)}, {v(O0+2+4*j)}, {v(O0+1+4*j)}")
        A.label(le)
    def service23_store():
        O0 = 176
        le = A.uid(N)
        A("s_cmp_lt_u32 s33, 2"); A(f"s_cbranch_scc1 {le}")
        for j in range(4): A(f"v_mov_b32 {v(O0+3+4*j)}, s58")
        A("s_lshl_b32 s46, s61, 4"); A(f"s_add_u32 s46, s46, {WS_ST:#x}")
        A("v_mov_b32 v6, 0")
        A("s_mov_b64 s[48:49], exec"); A("s_mov_b32 exec_lo, 0"); A("s_mov_b32 exec_hi, 0x80000000")
        for j in range(4):
            A(f"buffer_store_dwordx4 {v(O0+4*j,4)}, v6, s[28:31], s46 offen offset:{16*j} sc0 sc1")
        A("s_mov_b64 exec, s[48:49]")
        A.label(le)
    service_issue()
    A("s_lshr_b32 s38, s33, 1"); A("s_and_b32 s39, s33, 1")
    compute_setup(A, 'row', "s38", "s39", 8, 12, 4)
    service0_compute(); service23_compute()
    def hook(ch, ks):
        if ch == 0 and ks == 2: nonce_store()
        if ch == 1 and ks == 0:
            read_nonces(); service01_store(); service23_store()
        if ch == OPTS.get('a_w2ch', 99) and ks == 3:
            l = A.uid(N)
            A("s_cmp_lg_u32 s33, 2"); A(f"s_cbranch_scc1 {l}")
            srd(A, 52, 62, 0x80000)
            A("v_lshrrev_b32 v52, 3, v2"); A("v_and_b32 v53, 7, v2"); A("v_lshlrev_b32 v53, 7, v53"); A("v_lshl_add_u32 v52, v52, 10, v53")
            A("s_lshl_b32 s46, s25, 14")
            A("buffer_load_dword v190, v52, s[52:55], s46 offen"); A("s_add_u32 s46, s46, 8192")
            A("buffer_load_dword v191, v52, s[52:55], s46 offen")
            A.label(l)
    compute_loop(A, 'row', 64, 8, 12, 16, 32, hook=hook, last_barrier=True)
    A.stamp(6)
    A.stamp(7)
    A("v_and_b32 v50, 31, v2"); A("v_lshlrev_b32 v50, 4, v50"); A("s_lshl_b32 s46, s38, 10"); A(f"s_add_u32 s46, s46, {L_ST}"); A("v_add_u32 v50, s46, v50")
    A("ds_read_b128 v[128:131], v50"); A("ds_read_b128 v[132:135], v50 offset:512")
    A("v_lshrrev_b32 v51, 5, v2"); A("v_lshlrev_b32 v51, 4, v51"); A("s_lshl_b32 s46, s39, 8"); A(f"s_add_u32 s46, s46, {L_CS}"); A("v_add_u32 v51, s46, v51")
    for cb in range(2):
        for g in range(4):
            A(f"ds_read_b128 {v(16+16*cb+4*g,4)}, v51 offset:{cb*128+g*32}")
    A("s_waitcnt lgkmcnt(8)")
    A("s_lshr_b32 s50, s27, 2"); A("s_and_b32 s51, s27, 3")
    A(f"s_mov_b32 s52, {hexf(1.0)}"); A("s_cmp_eq_u32 s50, 0"); A(f"s_cselect_b32 s52, {hexf(QSCALE)}, s52")
    def w3_finish():
        l = A.uid(N)
        A("s_cmp_lg_u32 s33, 1"); A(f"s_cbranch_scc1 {l}")
        A("v_mov_b32 v4, 0x3f80"); A("v_mov_b32 v5, 0x3f800000")
        A("s_waitcnt vmcnt(8)")
        colsum4_reduce(A, 152, 4, 5, 184, 2, 192, 50)
        A("s_lshl_b32 s47, s27, 4"); A("s_add_u32 s47, s47, s26"); A("s_lshl_b32 s47, s47, 9"); A(f"s_add_u32 s47, s47, {WS_CS3:#x}")
        A("v_and_b32 v6, 15, v2"); A("v_lshrrev_b32 v7, 4, v2"); A("v_lshl_add_u32 v6, v6, 2, v7"); A("v_lshlrev_b32 v6, 3, v6")
        A(f"buffer_store_dwordx2 v[184:185], v6, s[28:31], s47 offen {OPTS['wt']}")
        A.label(l)
    A("s_cmp_eq_u32 s50, 3"); A(f"s_cbranch_scc1 {N}_epi_h")
    for b in range(2):
        A(f"v_mul_f32 {v(52+2*b)}, s52, {v(129+4*b)}")
    for b in range(2):
        A(f"v_mul_f32_e64 {v(53+2*b)}, -{v(128+4*b)}, {v(52+2*b)}")
    def apply_ln():
        for b in range(2):
            for cb in range(2):
                apply_ln_block(A, 64 + 16*(2*b+cb), 16 + 16*cb, 52 + 2*b, 56)
    A("s_waitcnt lgkmcnt(0)")
    apply_ln()
    A("v_lshlrev_b32 v50, 4, v2")
    l = A.uid(N)
    A("s_cmp_lg_u32 s50, 2"); A(f"s_cbranch_scc1 {l}")
    A("v_bfe_u32 v4, v2, 2, 3"); A("v_lshlrev_b32 v4, 3, v4"); A("v_lshrrev_b32 v5, 5, v2"); A("v_lshl_add_u32 v4, v5, 2, v4")
    A("v_and_b32 v5, 3, v2"); A("v_add_u32 v4, v4, v5"); A("v_lshlrev_b32 v50, 4, v4")
    A.label(l)
    A("s_lshl_b32 s46, s50, 21")
    A("s_lshl_b32 s47, s51, 3"); A("s_lshl_b32 s53, s39, 2"); A("s_add_u32 s47, s47, s53"); A("s_lshl_b32 s47, s47, 16"); A("s_add_u32 s46, s46, s47")
    A("s_lshl_b32 s47, s26, 2"); A("s_lshl_b32 s53, s38, 1"); A("s_add_u32 s47, s47, s53"); A("s_lshl_b32 s47, s47, 10"); A("s_add_u32 s46, s46, s47")
    for b in range(2):
        for cb in range(2):
            a = 64 + 16*(2*b+cb)
            for half in range(2):
                d = 136 + 8*((2*b+cb) % 2) + 4*half
                for j in range(4):
                    A(f"v_cvt_pk_bf16_f32 {v(d+j)}, {v(a+8*half+2*j)}, {v(a+8*half+2*j+1)}")
                A(f"s_add_u32 s47, s46, {(2*cb+half)*65536 + b*1024}")
                A(f"buffer_store_dwordx4 {v(d,4)}, v50, s[28:31], s47 offen {OPTS['wt']}")
    A(END)
    A.label(f"{N}_epi_h")
    A("s_and_b32 s53, s51, 1"); A("s_lshr_b32 s54, s51, 1"); A("s_add_u32 s54, s54, 1")
    A("s_sub_u32 s55, 0, s54"); A("s_cmp_eq_u32 s53, 0"); A("s_cselect_b32 s54, s54, s55")
    A("s_lshl_b32 s46, s26, 7"); A("s_lshl_b32 s47, s38, 6"); A("s_add_u32 s46, s46, s47"); A("s_add_u32 s46, s46, s54")
    A("v_and_b32 v4, 31, v2"); A("v_lshrrev_b32 v5, 5, v2"); A("v_lshlrev_b32 v5, 9, v5")
    for b in range(2):
        A(f"v_add_u32 {v(6)}, s46, v4")
        if b: A(f"v_add_u32 {v(6)}, 32, {v(6)}")
        A(f"v_mov_b32 {v(7)}, 0x800")
        A(f"v_cmp_lt_u32 vcc, {v(6)}, {v(7)}")
        A(f"v_mul_f32 {v(52+2*b)}, 1.0, {v(130+4*b)}")
        A(f"v_mul_f32_e64 {v(53+2*b)}, -{v(128+4*b)}, {v(130+4*b)}")
        A(f"v_cndmask_b32 {v(52+2*b)}, 0, {v(52+2*b)}, vcc")
        A(f"v_cndmask_b32 {v(53+2*b)}, 0, {v(53+2*b)}, vcc")
        A(f"v_and_b32 {v(6)}, 0x7ff, {v(6)}")
        A(f"v_lshrrev_b32 {v(7)}, 5, {v(6)}"); A(f"v_lshlrev_b32 {v(7)}, 15, {v(7)}")
        A(f"v_and_b32 {v(6)}, 31, {v(6)}"); A(f"v_lshl_add_u32 {v(6)}, {v(6)}, 4, {v(7)}")
        A(f"v_add_u32 {v(14+b)}, {v(6)}, v5")
    A("s_waitcnt lgkmcnt(0)")
    apply_ln()
    A(f"v_mov_b32 v4, {hexf(GK2)}"); A(f"v_mov_b32 v5, {hexf(GK1)}"); A("v_mov_b32 v6, 1.0"); A("v_mov_b32 v7, 1.0")
    A("s_lshl_b32 s47, s51, 3"); A("s_lshl_b32 s53, s39, 2"); A("s_add_u32 s47, s47, s53"); A("s_lshl_b32 s47, s47, 10"); A(f"s_add_u32 s46, s47, {WS_HS:#x}")
    for b in range(2):
        for cb in range(2):
            a = 64 + 16*(2*b+cb)
            gelu_regs(A, [a+2*j for j in range(8)], 16, 4, 6)
            for half in range(2):
                d = 136 + 8*((2*b+cb) % 2) + 4*half
                for j in range(4):
                    A(f"v_cvt_pk_bf16_f32 {v(d+j)}, {v(a+8*half+2*j)}, {v(a+8*half+2*j+1)}")
                A(f"s_add_u32 s47, s46, {(2*cb+half)*1024}")
                A(f"buffer_store_dwordx4 {v(d,4)}, {v(14+b)}, s[28:31], s47 offen {OPTS['wt']}")
    if PS:
        A.label(f"{N}_end")
        return None
    A.label(f"{N}_done")
    A("s_endpgm")
    return A.text(), 200, LDS_A
```

```python
from common import *
from gemm64d import *

LDS_B = 33792 + 49152 + 64
L_V, L_ONES, L_RED, L_SYNC = 16384, 32768, 33792, 33792 + 49152
NEGBIG = -1e30

def gen_B():
    A = Asm()
    N = "kB"
    A("s_cmp_ge_u32 s2, 256"); A(f"s_cbranch_scc1 {N}_done")
    A("s_load_dwordx2 s[4:5], s[0:1], 0")
    A("s_load_dwordx2 s[22:23], s[0:1], 80")
    A("v_lshrrev_b32 v1, 6, v0"); A("v_and_b32 v2, 63, v0"); A("v_readfirstlane_b32 s33, v1")
    A("s_and_b32 s24, s2, 7"); A("s_lshr_b32 s25, s2, 3")
    A("s_cmp_lt_u32 s33, 8"); A(f"s_cbranch_scc1 {N}_attn")
    A("s_sub_u32 s33, s33, 8")
    A("s_lshr_b32 s26, s25, 3"); A("s_lshl_b32 s27, s24, 2"); A("s_add_u32 s26, s26, s27")
    A("s_and_b32 s27, s25, 7")
    A("s_lshl_b32 s35, s33, 3")
    A("v_lshlrev_b32 v4, 4, v2")
    lz = A.uid(N)
    A("s_cmp_lg_u32 s33, 0"); A(f"s_cbranch_scc1 {lz}")
    A(f"v_mov_b32 v5, {L_SYNC}"); A("v_mov_b32 v6, 0"); A("ds_write_b32 v5, v6")
    A.label(lz)
    A("s_waitcnt lgkmcnt(0)")
    srd(A, 8, 4, 0x200000); srd(A, 28, 22, WS_SIZE)
    ACC = 80; VR = 16; VT = 4
    def pre():
        A("s_lshr_b32 s40, s33, 1"); A("s_and_b32 s41, s33, 1")
        A("s_lshl_b32 s42, s26, 6"); A("s_lshl_b32 s43, s40, 5"); A("s_add_u32 s42, s42, s43")
        A("s_lshl_b32 s43, s27, 6"); A("s_lshl_b32 s44, s41, 5"); A("s_add_u32 s43, s43, s44")
        A("v_and_b32 v12, 31, v2"); A("v_lshrrev_b32 v13, 5, v2")
        A("v_lshlrev_b32 v14, 10, v12"); A("v_lshl_add_u32 v14, v13, 3, v14")
        A("s_lshl_b32 s44, s42, 10"); A("s_lshl_b32 s45, s43, 1"); A("s_add_u32 s44, s44, s45")
        for g in range(4):
            A(f"buffer_load_dwordx2 {v(144+2*g,2)}, v14, s[8:11], s44 offen offset:{g*16}")
        A("v_lshlrev_b32 v15, 4, v12")
        A("s_lshl_b32 s45, s42, 4"); A(f"s_add_u32 s45, s45, {WS_ST:#x}")
        A("buffer_load_dwordx2 v[152:153], v15, s[28:31], s45 offen")
        return 5
    def sync4(A):
        lp = A.uid(N)
        A(f"v_mov_b32 v10, {L_SYNC}"); A("v_mov_b32 v11, 1")
        A("s_mov_b64 s[56:57], exec"); A("s_mov_b64 exec, 1")
        A("ds_add_u32 v10, v11")
        A("s_mov_b64 exec, s[56:57]")
        A.label(lp)
        A("ds_read_b32 v11, v10"); A("s_waitcnt lgkmcnt(0)")
        A("v_readfirstlane_b32 s56, v11"); A("s_nop 3")
        A("s_cmp_lt_u32 s56, 4"); A(f"s_cbranch_scc1 {lp}")
    A("s_and_b32 s37, s26, 3"); A("s_lshl_b32 s38, s37, 1"); A("s_add_u32 s38, s38, s27"); A("s_and_b32 s38, s38, 7")
    if not OPTS.get('b_rot', False): A("s_mov_b32 s38, 0")
    gemm64d(A, [SegD(WS_HS, WS_W2F, 32, "s35", 8, ACC, rot="s38")], 4, "s[28:31]", "s26", "s27", 4, 5, VR, 50, pre_hook=pre, P0=OPTS.get('b_P0', 3),
            mid_hook=lambda: A("s_barrier"))
    if OPTS.get('b_prio', 3): A(f"s_setprio {OPTS.get('b_prio', 3)}")
    A("s_nop 15")
    reduce_scatter_d(A, [ACC], "s33", L_RED, 2, VT, sync4)
    A("s_waitcnt vmcnt(0)")
    A("v_mul_f32_e64 v154, -v152, v153")
    A("v_mov_b32 v155, v154"); A("v_mov_b32 v152, v153")
    for g in range(4):
        for p_ in range(2):
            src = 144 + 2*g + p_
            A(f"v_lshlrev_b32 v16, 16, {v(src)}"); A(f"v_and_b32 v17, 0xffff0000, {v(src)}")
            a = ACC + 4*g + 2*p_
            A(f"v_pk_fma_f32 {v(a,2)}, v[16:17], v[152:153], {v(a,2)}")
            A(f"v_pk_add_f32 {v(a,2)}, {v(a,2)}, v[154:155]")
    A(f"v_pk_add_f32 v[18:19], {v(ACC,2)}, {v(ACC+2,2)}")
    A(f"v_pk_mul_f32 v[20:21], {v(ACC,2)}, {v(ACC,2)}")
    A(f"v_pk_fma_f32 v[20:21], {v(ACC+2,2)}, {v(ACC+2,2)}, v[20:21]")
    for j in range(4, 16, 2):
        A(f"v_pk_add_f32 v[18:19], v[18:19], {v(ACC+j,2)}")
        A(f"v_pk_fma_f32 v[20:21], {v(ACC+j,2)}, {v(ACC+j,2)}, v[20:21]")
    A("v_add_f32 v18, v18, v19"); A("v_add_f32 v19, v20, v21")
    A("v_mov_b32 v20, v18"); A("v_mov_b32 v21, v19"); A("s_nop 1")
    A("v_permlane32_swap_b32 v18, v20"); A("v_permlane32_swap_b32 v19, v21"); A("s_nop 1")
    A("v_add_f32 v18, v18, v20"); A("v_add_f32 v19, v19, v21")
    for j in range(8): A(f"v_cvt_pk_bf16_f32 {v(24+j)}, {v(ACC+2*j)}, {v(ACC+2*j+1)}")
    A("s_lshl_b32 s44, s26, 1"); A("s_add_u32 s44, s44, s40"); A("s_lshl_b32 s44, s44, 5")
    A("s_lshl_b32 s45, s27, 2"); A("s_add_u32 s44, s44, s45"); A("s_lshl_b32 s45, s41, 1"); A("s_add_u32 s44, s44, s45")
    A("s_lshl_b32 s44, s44, 10"); A(f"s_add_u32 s44, s44, {WS_X1:#x}")
    A("v_lshlrev_b32 v22, 4, v2")
    A(f"buffer_store_dwordx4 v[24:27], v22, s[28:31], s44 offen {OPTS['wt']}")
    A(f"buffer_store_dwordx4 v[28:31], v22, s[28:31], s44 offen offset:1024 {OPTS['wt']}")
    A("s_lshl_b32 s44, s42, 7"); A("s_lshl_b32 s45, s27, 1"); A("s_add_u32 s45, s45, s41"); A("s_lshl_b32 s45, s45, 3"); A("s_add_u32 s44, s44, s45"); A(f"s_add_u32 s44, s44, {WS_ST1:#x}")
    A("v_lshlrev_b32 v23, 7, v12")
    A("s_mov_b32 exec_hi, 0")
    A(f"buffer_store_dwordx2 v[18:19], v23, s[28:31], s44 offen {OPTS['wt']}")
    A("s_endpgm")
    A.label(f"{N}_attn")
    A("s_lshr_b32 s26, s25, 2"); A("s_sub_u32 s26, 7, s26")
    A("s_and_b32 s27, s25, 3"); A("s_lshl_b32 s28, s24, 2"); A("s_add_u32 s27, s27, s28")
    A("s_lshl_b32 s34, s26, 3"); A("s_add_u32 s35, s34, s33")
    A("s_waitcnt lgkmcnt(0)")
    A("s_lshl_b32 s36, s27, 16")
    A("s_add_u32 s8, s22, s36"); A("s_addc_u32 s9, s23, 0"); A(f"s_add_u32 s8, s8, {WS_K:#x}"); A("s_addc_u32 s9, s9, 0"); A("s_mov_b32 s10, 0x10000"); A("s_mov_b32 s11, 0x20000")
    A("s_add_u32 s12, s22, s36"); A("s_addc_u32 s13, s23, 0"); A(f"s_add_u32 s12, s12, {WS_V:#x}"); A("s_addc_u32 s13, s13, 0"); A("s_mov_b32 s14, 0x10000"); A("s_mov_b32 s15, 0x20000")
    srd(A, 28, 22, WS_SIZE)
    A("v_lshlrev_b32 v3, 4, v2")
    A("s_lshl_b32 s37, s33, 1"); A("s_add_u32 s38, s34, s37"); A("s_sub_u32 s38, s38, 8"); A("s_lshl_b32 s38, s38, 10")
    A("s_lshl_b32 s37, s37, 10")
    A("s_mov_b32 s39, 0")
    for j in range(2):
        A(f"s_add_u32 s40, s38, {j*1024}")
        A("v_add_u32 v4, s40, v3")
        A(f"s_add_u32 m0, s37, {j*1024}"); A("s_nop 0")
        A(f"buffer_load_dwordx4 v4, s[8:11], s39 offen lds")
        A(f"s_add_u32 m0, s37, {j*1024 + L_V}"); A("s_nop 0")
        A(f"buffer_load_dwordx4 v4, s[12:15], s39 offen lds")
    VQ = 8
    A("s_lshl_b32 s40, s35, 10"); A("s_add_u32 s40, s40, s36"); A(f"s_add_u32 s40, s40, {WS_Q:#x}")
    A(f"buffer_load_dwordx4 {v(VQ,4)}, v3, s[28:31], s40 offen")
    A("v_mov_b32 v5, 0x3f803f80"); A("v_and_b32 v6, 255, v0"); A("v_lshlrev_b32 v6, 2, v6"); A(f"ds_write_b32 v6, v5 offset:{L_ONES}")
    VKA, VVA, VST = 6, 7, 12
    A("v_lshrrev_b32 v13, 5, v2"); A("v_lshlrev_b32 v14, 7, v13")
    A("v_bfe_u32 v15, v2, 1, 1"); A("v_lshl_add_u32 v14, v15, 6, v14")
    A("v_bfe_u32 v15, v2, 2, 2"); A("v_lshl_add_u32 v14, v15, 4, v14")
    A("v_and_b32 v15, 1, v2"); A("v_lshl_add_u32 v14, v15, 3, v14")
    A(f"v_add_u32 v14, {L_V}, v14")
    A("v_lshlrev_b32 v13, 7, v13"); A("v_xor_b32 v13, 128, v13"); A(f"v_add_u32 v13, {L_ONES}, v13")
    A("v_bfe_u32 v15, v2, 4, 1"); A("v_cmp_eq_u32 s[44:45], 0, v15")
    A("v_mov_b32 v15, 1024")
    A(f"v_cndmask_b32 {v(VST)}, 0, v15, s[44:45]")
    A("s_cmp_ge_u32 s26, 1"); A("s_cselect_b32 s46, s33, 8"); A("s_lshl_b32 s46, s46, 10")
    A("v_add_u32 v14, s46, v14")
    A(f"v_cndmask_b32 {v(VVA)}, v13, v14, s[44:45]")
    A(f"v_add_u32 {v(VKA)}, s46, v3")
    KF = [16, 20]; SB = [32, 48]; M0, M8, NM, PP, VF, O, MX = 64, 80, 96, 112, [120, 128], 136, 24
    A.stamp(1)
    A("s_waitcnt vmcnt(0) lgkmcnt(0)")
    A("s_barrier")
    A.stamp(2)
    import attn
    attn.body(A, N, dict(VQ=VQ, VKA=VKA, VVA=VVA, VST=VST, KF=KF, SB=SB, M0=M0, M8=M8, NM=NM, PP=PP, VF=VF, O=O, MX=MX), "s26", "s35", 1)
    A("s_lshl_b32 s40, s35, 5"); A("s_add_u32 s40, s40, s27"); A("s_lshl_b32 s40, s40, 10"); A(f"s_add_u32 s40, s40, {WS_O:#x}")
    A(f"buffer_store_dwordx4 v[28:31], v3, s[28:31], s40 offen {OPTS['wt']}")
    A.label(f"{N}_done")
    A("s_endpgm")
    return A.text(), 168, LDS_B
```

```python
from common import *
from gemm_core import *
from gemm64d import *

LDS_C = 131072 + 2048
def gen_C(A=None):
    PS = OPTS['persist']
    if A is None: A = Asm()
    N = "kC"
    END = f"s_branch {N}_end" if PS else "s_endpgm"
    if not PS:
        A("s_cmp_ge_u32 s2, 256"); A(f"s_cbranch_scc1 {N}_done")
    A("s_and_b32 s24, s2, 7"); A("s_lshr_b32 s25, s2, 3")
    A("s_load_dwordx2 s[18:19], s[0:1], 48")
    A("s_load_dwordx2 s[22:23], s[0:1], 80")
    A("s_load_dwordx2 s[4:5], s[0:1], 16")
    A("s_load_dwordx2 s[6:7], s[0:1], 56")
    A("s_mul_i32 s26, s25, 37"); A("s_lshr_b32 s26, s26, 8")
    A("s_mul_i32 s27, s26, 7"); A("s_sub_u32 s27, s25, s27")
    A("s_lshr_b32 s28, s24, 1"); A("s_lshl_b32 s28, s28, 2"); A("s_add_u32 s26, s26, s28")
    A("s_and_b32 s28, s24, 1"); A("s_mul_i32 s28, s28, 7"); A("s_add_u32 s27, s27, s28")
    A("v_lshrrev_b32 v1, 6, v0"); A("v_and_b32 v2, 63, v0"); A("v_readfirstlane_b32 s33, v1")
    if OPTS.get('c_rot', False):
        A("s_mul_i32 s37, s25, 37"); A("s_lshr_b32 s37, s37, 8"); A("s_mul_i32 s36, s37, 7"); A("s_sub_u32 s36, s25, s36")
        A("s_lshl_b32 s37, s37, 1"); A("s_add_u32 s37, s37, s36"); A("s_and_b32 s37, s37, 7")
    else: A("s_mov_b32 s37, 0")
    A("s_movk_i32 s34, 3584"); A("s_lshl_b32 s35, s27, 8")
    A("s_waitcnt lgkmcnt(0)")
    srd(A, 12, 18, 0x1C0000); srd(A, 28, 22, WS_SIZE)
    if PS:
        load_nonce(A, "s60", 4)
        A("s_cmp_ge_u32 s25, 28"); A(f"s_cbranch_scc1 {N}_idle")
        lw = A.uid(N)
        A("s_cmp_lg_u32 s33, 4"); A(f"s_cbranch_scc1 {lw}")
        A("v_and_b32 v6, 15, v2"); A("v_lshlrev_b32 v6, 2, v6")
        A("s_lshl_b32 s40, s26, 7"); A(f"s_add_u32 s40, s40, {F_X:#x}"); A("s_lshl_b32 s41, s27, 7"); A(f"s_add_u32 s41, s41, {F_A2:#x}")
        A("v_mov_b32 v7, s40"); A("v_mov_b32 v8, s41"); A("v_cmp_le_u32 vcc, 16, v2"); A("s_nop 1"); A("v_cndmask_b32 v7, v7, v8, vcc"); A("v_add_u32 v6, v6, v7")
        poll_flags(A, 6, "s[28:31]", "s60", 7, 0xffffffff)
        A.label(lw)
        A("s_barrier")
    A("s_cmp_ge_u32 s33, 4"); A(f"s_cbranch_scc1 {N}_loader")
    def pf_x1():
        A("s_lshr_b32 s50, s24, 1"); A("s_lshl_b32 s50, s50, 4"); A("s_lshr_b32 s51, s25, 1"); A("s_add_u32 s50, s50, s51")
        A("s_lshl_b32 s50, s50, 5"); A("s_and_b32 s51, s25, 1"); A("s_lshl_b32 s51, s51, 3"); A("s_add_u32 s50, s50, s51")
        A("s_lshl_b32 s50, s50, 10"); A(f"s_add_u32 s50, s50, {WS_X1:#x}")
        A("v_lshlrev_b32 v4, 7, v2")
        A("buffer_load_dword v150, v4, s[28:31], s50 offen")
        A("s_add_u32 s50, s50, 16384")
        A("buffer_load_dword v151, v4, s[28:31], s50 offen")
    def pf_w4():
        srd(A, 52, 6, 0x1C0000); srd(A, 56, 4, 0x80000)
        A("v_lshrrev_b32 v4, 2, v2"); A("v_and_b32 v5, 3, v2"); A("v_lshlrev_b32 v5, 7, v5"); A("v_lshl_add_u32 v4, v4, 10, v5")
        A("s_and_b32 s50, s24, 1"); A("s_lshl_b32 s50, s50, 9")
        A("s_lshl_b32 s51, s25, 14"); A("s_add_u32 s51, s51, s50")
        A("buffer_load_dword v145, v4, s[56:59], s51 offen")
        A("s_mul_i32 s51, s25, 57344"); A("s_add_u32 s51, s51, s50")
        for j in range(4):
            if j == 3: A("s_mov_b32 exec_hi, 0")
            A(f"buffer_load_dword {v(146+j)}, v4, s[52:55], s51 offen")
            A("s_add_u32 s51, s51, 16384")
        A("s_mov_b32 exec_hi, -1")
    l1 = A.uid(N)
    A("s_cmp_lg_u32 s33, 0"); A(f"s_cbranch_scc1 {l1}")
    if OPTS.get('c_pfx', False): pf_x1()
    A.label(l1)
    l2 = A.uid(N)
    A("s_cmp_ge_u32 s25, 28"); A(f"s_cbranch_scc1 {N}_idle")
    A.label(l2)
    def stats_issue():
        A("v_and_b32 v12, 31, v2"); A("v_lshrrev_b32 v13, 5, v2"); A("v_lshlrev_b32 v14, 7, v12"); A("v_lshl_add_u32 v14, v13, 6, v14")
        A("s_lshl_b32 s50, s26, 7"); A("s_lshl_b32 s51, s33, 5"); A("s_add_u32 s50, s50, s51"); A("s_lshl_b32 s50, s50, 7"); A(f"s_add_u32 s50, s50, {WS_ST1:#x}")
        for j in range(4): A(f"buffer_load_dwordx4 {v(16+4*j,4)}, v14, s[28:31], s50 offen offset:{16*j} {OPTS['ld']}")
        A("v_lshlrev_b32 v15, 2, v12"); A("v_lshl_add_u32 v15, v13, 12, v15")
        A("s_lshl_b32 s50, s27, 13"); A("s_lshl_b32 s51, s33, 7"); A("s_add_u32 s50, s50, s51"); A(f"s_add_u32 s50, s50, {WS_CS3:#x}")
        for j in range(8): A(f"buffer_load_dword {v(32+j)}, v15, s[28:31], s50 offen offset:{512*j} {OPTS['ld']}")
    def stats_finish():
        A("v_pk_add_f32 v[16:17], v[16:17], v[18:19]"); A("v_pk_add_f32 v[20:21], v[20:21], v[22:23]")
        A("v_pk_add_f32 v[24:25], v[24:25], v[26:27]"); A("v_pk_add_f32 v[28:29], v[28:29], v[30:31]")
        A("v_pk_add_f32 v[16:17], v[16:17], v[20:21]"); A("v_pk_add_f32 v[24:25], v[24:25], v[28:29]")
        A("v_pk_add_f32 v[16:17], v[16:17], v[24:25]")
        for j in range(1, 8, 2): A(f"v_add_f32 {v(32+j-1)}, {v(32+j-1)}, {v(32+j)}")
        A("v_add_f32 v32, v32, v34"); A("v_add_f32 v36, v36, v38"); A("v_add_f32 v32, v32, v36")
        A("v_mov_b32 v18, v16"); A("v_mov_b32 v19, v17"); A("v_mov_b32 v33, v32"); A("s_nop 1")
        A("v_permlane32_swap_b32 v16, v18"); A("v_permlane32_swap_b32 v17, v19"); A("v_permlane32_swap_b32 v32, v33"); A("s_nop 1")
        A("v_add_f32 v16, v16, v18"); A("v_add_f32 v17, v17, v19"); A("v_add_f32 v32, v32, v33")
        A(f"v_mul_f32 v16, {hexf(1/512)}, v16"); A(f"v_mul_f32 v17, {hexf(1/512)}, v17")
        A("v_fma_f32 v17, -v16, v16, v17"); A("v_max_f32 v17, 0, v17"); A(f"v_add_f32 v17, {hexf(EPS)}, v17")
        A("v_rsq_f32 v20, v17"); A("s_nop 0")
        A("v_mul_f32_e64 v21, -v16, v20")
        A("v_lshlrev_b32 v22, 3, v12"); A("s_lshl_b32 s50, s33, 8"); A("s_add_u32 s50, s50, 131072"); A("v_add_u32 v22, s50, v22")
        A("v_lshlrev_b32 v23, 2, v12"); A("s_lshl_b32 s50, s33, 7"); A("s_add_u32 s50, s50, 132096"); A("v_add_u32 v23, s50, v23")
        A("s_mov_b32 exec_hi, 0")
        A("ds_write_b64 v22, v[20:21]"); A("ds_write_b32 v23, v32")
        A("s_mov_b32 exec_hi, -1")
        A("s_waitcnt lgkmcnt(0)")
    A.stamp(0)
    stats_issue()
    A("s_waitcnt vmcnt(0)")
    stats_finish()
    A("s_lshr_b32 s38, s33, 1"); A("s_and_b32 s39, s33, 1")
    compute_setup(A, 'frag', "s38", "s39", 8, 12, 4)
    def chook(ch, ks):
        if ch == OPTS.get('c_pf_ch', 99) and ks == 3:
            l3 = A.uid(N)
            A("s_cmp_lg_u32 s33, 1"); A(f"s_cbranch_scc1 {l3}")
            pf_w4()
            A.label(l3)
    compute_loop(A, 'frag', 64, 8, 12, 16, 32, hook=chook)
    A("v_and_b32 v4, 31, v2"); A("v_lshlrev_b32 v4, 3, v4"); A("s_lshl_b32 s46, s38, 9"); A("s_add_u32 s46, s46, 131072"); A("v_add_u32 v4, s46, v4")
    A("ds_read_b64 v[52:53], v4"); A("ds_read_b64 v[54:55], v4 offset:256")
    A("v_lshrrev_b32 v51, 5, v2"); A("v_lshlrev_b32 v51, 4, v51"); A("s_lshl_b32 s46, s39, 8"); A("s_add_u32 s46, s46, 132096"); A("v_add_u32 v51, s46, v51")
    for cb in range(2):
        for g in range(4):
            A(f"ds_read_b128 {v(16+16*cb+4*g,4)}, v51 offset:{cb*128+g*32}")
    A("s_waitcnt lgkmcnt(0)")
    for b in range(2):
        for cb in range(2):
            apply_ln_block(A, 64 + 16*(2*b+cb), 16 + 16*cb, 52 + 2*b, 56)
    A.stamp(6)
    A(f"v_mov_b32 v4, {hexf(GK2)}"); A(f"v_mov_b32 v5, {hexf(GK1)}"); A("v_mov_b32 v6, 1.0"); A("v_mov_b32 v7, 1.0")
    A("v_lshlrev_b32 v14, 4, v2")
    A("s_lshl_b32 s46, s26, 2"); A("s_lshl_b32 s47, s38, 1"); A("s_add_u32 s46, s46, s47"); A("s_mul_i32 s46, s46, 112")
    A("s_lshl_b32 s47, s27, 3"); A("s_add_u32 s46, s46, s47"); A("s_lshl_b32 s47, s39, 2"); A("s_add_u32 s46, s46, s47")
    A("s_lshl_b32 s46, s46, 10"); A(f"s_add_u32 s46, s46, {WS_U:#x}")
    for b in range(2):
        for cb in range(2):
            a = 64 + 16*(2*b+cb)
            gelu_regs(A, [a+2*j for j in range(8)], 16, 4, 6)
            for half in range(2):
                d = 128 + 8*((2*b+cb) % 2) + 4*half
                for j in range(4):
                    A(f"v_cvt_pk_bf16_f32 {v(d+j)}, {v(a+8*half+2*j)}, {v(a+8*half+2*j+1)}")
                A(f"s_add_u32 s47, s46, {(b*112 + 2*cb+half)*1024}")
                A(f"buffer_store_dwordx4 {v(d,4)}, v14, s[28:31], s47 offen {OPTS['wt']}")
    A(END)
    A.label(f"{N}_loader")
    A("s_cmp_ge_u32 s25, 28"); A(f"s_cbranch_scc1 {N}_idle")
    A("s_sub_u32 s38, s33, 4")
    loader_setup(A, 'frag', 8, 9, 10, 4, "s34")
    A("s_lshl_b32 s40, s26, 2"); A("s_add_u32 s40, s40, s38"); A("s_lshl_b32 s40, s40, 15"); A(f"s_add_u32 s40, s40, {WS_X1:#x}")
    A("s_lshl_b32 s41, s38, 4"); A("s_mul_i32 s41, s41, s34"); A("s_add_u32 s41, s41, s35")
    A("s_lshl_b32 s42, s34, 2"); A("s_lshl_b32 s43, s34, 6")
    A("s_lshl_b32 s44, s38, 12"); A("s_lshl_b32 s45, s38, 12")
    loader_loop_c(A, "s[28:31]", "s[12:15]", 8, 9, 10, "s40", "s41", "4096", "s43", "s42", "s44", "s45", "s46", "s37", "s47", "s48", endinstr=END)
    A.label(f"{N}_idle")
    srd(A, 52, 6, 0x1C0000)
    A("s_sub_u32 s50, s25, 28"); A("s_lshl_b32 s51, s24, 2"); A("s_add_u32 s50, s50, s51"); A("s_lshl_b32 s50, s50, 3"); A("s_add_u32 s50, s50, s33")
    A("s_lshl_b32 s56, s33, 13")
    R = relayout_unit(A, None, None, None, None, None, 'perm', "s56", 2, 4)
    nun = 4
    for j in range(nun):
        lsk = A.uid(N)
        A(f"s_add_u32 s57, s50, {256*j}")
        A("s_min_u32 s57, s57, 895")
        A("s_mul_i32 s58, s57, 37450"); A("s_lshr_b32 s58, s58, 22")
        A("s_mul_i32 s59, s58, 112"); A("s_sub_u32 s59, s57, s59")
        A("s_lshl_b32 s60, s59, 14"); A("s_lshl_b32 s61, s58, 7"); A("s_add_u32 s60, s60, s61")
        relayout_issue(A, R, "s[52:55]", "s60", "s56", j * 2048, "s61")
        A(f"s_lshl_b32 s{40+2*j}, s58, 1"); A(f"s_mul_i32 s{40+2*j}, s{40+2*j}, 112"); A(f"s_add_u32 s{40+2*j}, s{40+2*j}, s59")
        A(f"s_lshl_b32 s{40+2*j}, s{40+2*j}, 10"); A(f"s_add_u32 s{40+2*j}, s{40+2*j}, {WS_W4F:#x}"); A(f"s_add_u32 s{41+2*j}, s{40+2*j}, {112*1024}")
    for j in range(nun):
        A(f"s_waitcnt vmcnt({2*(nun-1-j) + 2*j})")
        relayout_finish(A, R, "s[28:31]", f"s{40+2*j}", f"s{41+2*j}", j * 2048, 16 + 8 * j, OPTS['wt'])
    if PS:
        A("s_waitcnt vmcnt(0)"); A("s_barrier")
        lw = A.uid(N)
        A("s_cmp_lg_u32 s33, 0"); A(f"s_cbranch_scc1 {lw}")
        load_nonce(A, "s60", 4)
        A("s_sub_u32 s44, s25, 28"); A("s_lshl_b32 s45, s24, 2"); A("s_add_u32 s44, s44, s45"); A("s_lshl_b32 s44, s44, 2"); A(f"s_add_u32 s44, s44, {F_W:#x}")
        publish_flag(A, "s44", "s[28:31]", "s60", 4)
        A.label(lw)
        A(f"s_branch {N}_skip")
        A.label(f"{N}_end")
        A("s_mov_b64 exec, -1"); A("s_waitcnt vmcnt(0)"); A("s_barrier")
        lw = A.uid(N)
        A("s_cmp_lg_u32 s33, 0"); A(f"s_cbranch_scc1 {lw}")
        load_nonce(A, "s60", 4)
        A("s_lshl_b32 s44, s26, 7"); A("s_lshl_b32 s45, s27, 2"); A("s_add_u32 s44, s44, s45"); A(f"s_add_u32 s44, s44, {F_U:#x}")
        publish_flag(A, "s44", "s[28:31]", "s60", 4)
        A.label(lw)
        A.label(f"{N}_skip")
        return None
    A.label(f"{N}_done")
    A("s_endpgm")
    return A.text(), 152, LDS_C

def loader_loop_c(A, srdX, srdW, vXe, vXo, vW, sXbase, sWbase, sXadv, sWadv, sWstep, sLdsX, sLdsW, stmp, sRot, sXoff, sWoff, nchunk=8, endinstr='s_endpgm'):
    loader_loop(A, 'frag', srdX, srdW, vXe, vXo, vW, sXbase, sWbase, sXadv, sWadv, sWstep, sLdsX, sLdsW, stmp, sRot, sXoff, sWoff, endinstr=endinstr)
```

```python
from common import *
from gemm64d import *

LDS_D = 4 * 24576
def gen_D(A=None):
    PS = OPTS['persist']
    if A is None: A = Asm()
    N = "kD"
    if not PS:
        A("s_cmp_ge_u32 s2, 256"); A(f"s_cbranch_scc1 {N}_done")
    A("s_load_dwordx2 s[4:5], s[0:1], 0")
    A("s_load_dwordx2 s[18:19], s[0:1], 64")
    A("s_load_dwordx2 s[22:23], s[0:1], 80")
    A("v_lshrrev_b32 v1, 6, v0"); A("v_and_b32 v2, 63, v0"); A("v_readfirstlane_b32 s33, v1")
    A("s_and_b32 s24, s2, 7"); A("s_lshr_b32 s25, s2, 3")
    if OPTS.get('d_map', 8) == 4:
        A("s_lshr_b32 s26, s24, 1"); A("s_lshl_b32 s26, s26, 3"); A("s_lshr_b32 s27, s25, 2"); A("s_add_u32 s26, s26, s27")
        A("s_and_b32 s27, s24, 1"); A("s_lshl_b32 s27, s27, 2"); A("s_and_b32 s28, s25, 3"); A("s_add_u32 s27, s27, s28")
    else:
        A("s_lshr_b32 s26, s25, 3"); A("s_lshl_b32 s27, s24, 2"); A("s_add_u32 s26, s26, s27")
        A("s_and_b32 s27, s25, 7")
    A("s_mul_i32 s35, s33, 28")
    A("s_lshl_b32 s36, s33, 3")
    A("v_lshlrev_b32 v4, 4, v2")
    A("s_waitcnt lgkmcnt(0)")
    srd(A, 28, 22, WS_SIZE); srd(A, 8, 4, 0x200000); srd(A, 44, 18, 0x200000)
    if PS:
        load_nonce(A, "s60", 5)
        lw = A.uid(N)
        A("s_cmp_lg_u32 s33, 0"); A(f"s_cbranch_scc1 {lw}")
        A("v_and_b32 v6, 31, v2"); A("v_lshlrev_b32 v6, 2, v6")
        A("s_lshr_b32 s40, s26, 2"); A("s_lshl_b32 s40, s40, 7"); A(f"s_add_u32 s40, s40, {F_O:#x}")
        A("s_lshr_b32 s41, s26, 1"); A("s_lshl_b32 s41, s41, 7"); A(f"s_add_u32 s41, s41, {F_U:#x}")
        A("v_mov_b32 v7, s40"); A("v_mov_b32 v8, s41"); A("v_cmp_le_u32 vcc, 32, v2"); A("s_nop 1"); A("v_cndmask_b32 v7, v7, v8, vcc")
        A(f"v_add_u32 v9, {F_W:#x}, v6"); A("v_add_u32 v8, v6, v7")
        poll_flags(A, 8, "s[28:31]", "s60", 10, [0x3fffffffffff, 0xffffffff], loads=2)
        A.label(lw)
        A("s_barrier")
        A("s_cmp_ge_u32 s33, 4"); A(f"s_cbranch_scc1 {N}_idlew")
    P = OPTS.get('d_P', 6)
    ACH, ACS, VR = 128, 192, 16
    XR, X1R = 112, 120
    assert 16 + 16 * P <= 112
    def pre():
        A("s_lshr_b32 s60, s33, 1"); A("s_and_b32 s61, s33, 1")
        A("s_lshl_b32 s62, s26, 6"); A("s_lshl_b32 s63, s60, 5"); A("s_add_u32 s62, s62, s63")
        A("s_lshl_b32 s63, s27, 6"); A("s_lshl_b32 s64, s61, 5"); A("s_add_u32 s63, s63, s64")
        A("v_and_b32 v12, 31, v2"); A("v_lshrrev_b32 v13, 5, v2")
        A("v_lshlrev_b32 v14, 10, v12"); A("v_lshl_add_u32 v14, v13, 3, v14")
        A("s_lshl_b32 s64, s62, 10"); A("s_lshl_b32 s65, s63, 1"); A("s_add_u32 s64, s64, s65")
        for g in range(4):
            A(f"buffer_load_dwordx2 {v(XR+2*g,2)}, v14, s[8:11], s64 offen offset:{g*16}")
        A("s_lshl_b32 s59, s26, 1"); A("s_add_u32 s59, s59, s60"); A("s_lshl_b32 s59, s59, 5")
        A("s_lshl_b32 s65, s27, 2"); A("s_add_u32 s59, s59, s65"); A("s_lshl_b32 s65, s61, 1"); A("s_add_u32 s59, s59, s65")
        A("s_lshl_b32 s59, s59, 10"); A(f"s_add_u32 s59, s59, {WS_X1:#x}")
        A(f"buffer_load_dwordx4 {v(X1R,4)}, v4, s[28:31], s59 offen {OPTS['ld']}")
        A(f"buffer_load_dwordx4 {v(X1R+4,4)}, v4, s[28:31], s59 offen offset:1024 {OPTS['ld']}")
        return 6
    if OPTS.get('d_rot', False):
        A("s_and_b32 s37, s26, 3"); A("s_lshl_b32 s38, s37, 1"); A("s_add_u32 s38, s38, s27"); A("s_and_b32 s38, s38, 7")
        A("s_mul_i32 s39, s27, 7"); A("s_lshr_b32 s39, s39, 1"); A("s_mul_i32 s37, s37, 7"); A("s_add_u32 s39, s39, s37")
        A("s_cmp_ge_u32 s39, 28"); A("s_cselect_b32 s37, 28, 0"); A("s_sub_u32 s39, s39, s37")
    else:
        A("s_mov_b32 s38, 0"); A("s_mov_b32 s39, 0")
    segs = [SegD(WS_O, WS_WOF, 32, "s36", 8, ACS, rot="s38"), SegD(WS_U, WS_W4F, 112, "s35", 28, ACH, rot="s39")]
    gemm64d(A, segs, P, "s[28:31]", "s26", "s27", 4, 5, VR, 50, pre_hook=pre, P0=OPTS.get('d_P0', 3))
    A("s_nop 15")
    reduce_scatter_d(A, [ACH, ACS], "s33", 0, 2, 4, lambda A: A("s_barrier"))
    A("s_waitcnt vmcnt(0)")
    A(f"v_mov_b32 v16, {hexf(-LOG2E)}"); A(f"v_mov_b32 v17, {hexf(-LOG2E)}"); A("v_mov_b32 v18, 1.0"); A("v_mov_b32 v19, 1.0")
    for j in range(8):
        A(f"v_lshlrev_b32 {v(56+2*j)}, 16, {v(X1R+j)}"); A(f"v_and_b32 {v(57+2*j)}, 0xffff0000, {v(X1R+j)}")
    for j in range(8): A(f"v_pk_add_f32 {v(ACH+2*j,2)}, {v(ACH+2*j,2)}, {v(56+2*j,2)}")
    for j in range(8): A(f"v_pk_mul_f32 {v(32+2*j,2)}, {v(ACH+2*j,2)}, v[16:17]")
    for j in range(16): A(f"v_exp_f32 {v(32+j)}, {v(32+j)}")
    for j in range(8):
        A(f"v_lshlrev_b32 {v(56+2*j)}, 16, {v(XR+j)}"); A(f"v_and_b32 {v(57+2*j)}, 0xffff0000, {v(XR+j)}")
    for j in range(8): A(f"v_pk_add_f32 {v(32+2*j,2)}, {v(32+2*j,2)}, v[18:19]")
    for j in range(16): A(f"v_rcp_f32 {v(32+j)}, {v(32+j)}")
    A("s_nop 0")
    for j in range(8): A(f"v_pk_mul_f32 {v(ACH+2*j,2)}, {v(ACH+2*j,2)}, {v(32+2*j,2)}")
    for j in range(8): A(f"v_pk_fma_f32 {v(ACH+2*j,2)}, {v(ACH+2*j,2)}, {v(ACS+2*j,2)}, {v(56+2*j,2)}")
    for j in range(8): A(f"v_cvt_pk_bf16_f32 {v(48+j)}, {v(ACH+2*j)}, {v(ACH+2*j+1)}")
    for g in range(4):
        A(f"buffer_store_dwordx2 {v(48+2*g,2)}, v14, s[44:47], s64 offen offset:{g*16} ")
    if PS:
        A("s_endpgm")
        A.label(f"{N}_idlew")
        A("s_barrier")
        return None
    A.label(f"{N}_done")
    A("s_endpgm")
    return A.text(), 256, LDS_D
```

```python
from common import *
from gemm_core import *
from gemm64d import *
import kA, kC, kD
SY = [133664 + 4 * i for i in range(12)]
LDS_P = 135168
L_V, L_ONES, L_RED = 16384, 32768, 33792
NEGBIG = -1e30

def ids(A):
    A("v_lshrrev_b32 v1, 6, v0"); A("v_and_b32 v2, 63, v0"); A("s_and_b32 s24, s2, 7"); A("v_readfirstlane_b32 s33, v1")
    A("s_lshr_b32 s25, s2, 3")

def phase_barrier(A):
    A("s_mov_b64 exec, -1"); A("s_setprio 0")
    A("s_barrier")

def phase_B(A):
    N = "pB"
    A("s_load_dwordx2 s[4:5], s[0:1], 0")
    A("s_load_dwordx2 s[22:23], s[0:1], 80")
    ids(A)
    load_nonce(A, "s60", 4)
    srd(A, 28, 22, WS_SIZE)
    A("s_cmp_ge_u32 s33, 4"); A(f"s_cbranch_scc1 {N}_attn")
    A("s_lshr_b32 s26, s25, 3"); A("s_lshl_b32 s27, s24, 2"); A("s_add_u32 s26, s26, s27")
    A("s_and_b32 s27, s25, 7")
    A("s_lshl_b32 s35, s33, 3")
    A("v_lshlrev_b32 v4, 4, v2")
    srd(A, 8, 4, 0x200000)
    lw = A.uid(N)
    A("s_cmp_lg_u32 s33, 0"); A(f"s_cbranch_scc1 {lw}")
    A("s_lshr_b32 s40, s26, 1")
    A("s_and_b32 s41, s26, 1"); A("s_lshl_b32 s41, s41, 1"); A("s_sub_u32 s41, s41, 1"); A("s_add_u32 s41, s41, s40"); A("s_and_b32 s41, s41, 15")
    A("s_lshl_b32 s42, s27, 1")
    A("v_and_b32 v6, 15, v2"); A("v_lshrrev_b32 v7, 4, v2")
    A("v_mov_b32 v8, s40")
    A("v_cmp_eq_u32 vcc, 1, v7"); A("v_mov_b32 v9, s41"); A("s_nop 0"); A("v_cndmask_b32 v8, v8, v9, vcc")
    A("v_add_u32 v9, 12, v6"); A("v_cndmask_b32 v6, v6, v9, vcc")
    A("v_cmp_le_u32 vcc, 2, v7"); A("v_subrev_u32 v9, 2, v7"); A("v_add_u32 v9, s42, v9"); A("v_cndmask_b32 v8, v8, v9, vcc")
    A("v_lshlrev_b32 v8, 7, v8"); A("v_lshl_add_u32 v8, v6, 2, v8"); A(f"v_add_u32 v8, {F_A:#x}, v8")
    poll_flags(A, 8, "s[28:31]", "s60", 9, 0xffffffff000fffff)
    A.label(lw)
    lds_sync(A, 4, SY[0])
    ACC = 80; VR = 16; VT = 4
    def pre():
        A("s_lshr_b32 s40, s33, 1"); A("s_and_b32 s41, s33, 1")
        A("s_lshl_b32 s42, s26, 6"); A("s_lshl_b32 s43, s40, 5"); A("s_add_u32 s42, s42, s43")
        A("s_lshl_b32 s43, s27, 6"); A("s_lshl_b32 s44, s41, 5"); A("s_add_u32 s43, s43, s44")
        A("v_and_b32 v12, 31, v2"); A("v_lshrrev_b32 v13, 5, v2")
        A("v_lshlrev_b32 v14, 10, v12"); A("v_lshl_add_u32 v14, v13, 3, v14")
        A("s_lshl_b32 s44, s42, 10"); A("s_lshl_b32 s45, s43, 1"); A("s_add_u32 s44, s44, s45")
        for g in range(4):
            A(f"buffer_load_dwordx2 {v(144+2*g,2)}, v14, s[8:11], s44 offen offset:{g*16}")
        A("v_lshlrev_b32 v15, 4, v12")
        A("s_lshl_b32 s45, s42, 4"); A(f"s_add_u32 s45, s45, {WS_ST:#x}")
        A(f"buffer_load_dwordx2 v[152:153], v15, s[28:31], s45 offen {OPTS['ld']}")
        return 5
    A("s_mov_b32 s38, 0")
    gemm64d(A, [SegD(WS_HS, WS_W2F, 32, "s35", 8, ACC, rot="s38")], 4, "s[28:31]", "s26", "s27", 4, 5, VR, 50, pre_hook=pre, P0=OPTS.get('b_P0', 3))
    A("s_setprio 3")
    A("s_nop 15")
    reduce_scatter_d(A, [ACC], "s33", L_RED, 2, VT, lambda A: lds_sync(A, 4, SY[1]))
    A("s_waitcnt vmcnt(0)")
    A("v_mul_f32_e64 v154, -v152, v153")
    A("v_mov_b32 v155, v154"); A("v_mov_b32 v152, v153")
    for g in range(4):
        for p_ in range(2):
            src = 144 + 2*g + p_; k = 2*g + p_
            A(f"v_lshlrev_b32 {v(32+2*k)}, 16, {v(src)}"); A(f"v_and_b32 {v(33+2*k)}, 0xffff0000, {v(src)}")
    for k in range(8): A(f"v_pk_fma_f32 {v(ACC+2*k,2)}, {v(32+2*k,2)}, v[152:153], {v(ACC+2*k,2)}")
    for k in range(8): A(f"v_pk_add_f32 {v(ACC+2*k,2)}, {v(ACC+2*k,2)}, v[154:155]")
    for j in range(8): A(f"v_cvt_pk_bf16_f32 {v(24+j)}, {v(ACC+2*j)}, {v(ACC+2*j+1)}")
    A("s_lshl_b32 s44, s26, 1"); A("s_add_u32 s44, s44, s40"); A("s_lshl_b32 s44, s44, 5")
    A("s_lshl_b32 s45, s27, 2"); A("s_add_u32 s44, s44, s45"); A("s_lshl_b32 s45, s41, 1"); A("s_add_u32 s44, s44, s45")
    A("s_lshl_b32 s44, s44, 10"); A(f"s_add_u32 s44, s44, {WS_X1:#x}")
    A("v_lshlrev_b32 v22, 4, v2")
    A(f"buffer_store_dwordx4 v[24:27], v22, s[28:31], s44 offen {OPTS['wt']}")
    A(f"buffer_store_dwordx4 v[28:31], v22, s[28:31], s44 offen offset:1024 {OPTS['wt']}")
    A(f"v_pk_add_f32 v[18:19], {v(ACC,2)}, {v(ACC+2,2)}")
    A(f"v_pk_mul_f32 v[20:21], {v(ACC,2)}, {v(ACC,2)}")
    A(f"v_pk_fma_f32 v[20:21], {v(ACC+2,2)}, {v(ACC+2,2)}, v[20:21]")
    for j in range(4, 16, 2):
        A(f"v_pk_add_f32 v[18:19], v[18:19], {v(ACC+j,2)}")
        A(f"v_pk_fma_f32 v[20:21], {v(ACC+j,2)}, {v(ACC+j,2)}, v[20:21]")
    A("v_add_f32 v18, v18, v19"); A("v_add_f32 v19, v20, v21")
    A("v_mov_b32 v20, v18"); A("v_mov_b32 v21, v19"); A("s_nop 1")
    A("v_permlane32_swap_b32 v18, v20"); A("v_permlane32_swap_b32 v19, v21"); A("s_nop 1")
    A("v_add_f32 v18, v18, v20"); A("v_add_f32 v19, v19, v21")
    A("s_lshl_b32 s44, s42, 7"); A("s_lshl_b32 s45, s27, 1"); A("s_add_u32 s45, s45, s41"); A("s_lshl_b32 s45, s45, 3"); A("s_add_u32 s44, s44, s45"); A(f"s_add_u32 s44, s44, {WS_ST1:#x}")
    A("v_lshlrev_b32 v23, 7, v12")
    A("s_mov_b32 exec_hi, 0")
    A(f"buffer_store_dwordx2 v[18:19], v23, s[28:31], s44 offen {OPTS['wt']}")
    A("s_mov_b32 exec_hi, -1")
    A("s_waitcnt vmcnt(0)")
    lds_sync(A, 4, SY[2])
    lw = A.uid(N)
    A("s_cmp_lg_u32 s33, 0"); A(f"s_cbranch_scc1 {lw}")
    A("s_lshr_b32 s44, s26, 1"); A("s_lshl_b32 s44, s44, 7"); A("s_and_b32 s45, s26, 1"); A("s_lshl_b32 s45, s45, 3"); A("s_add_u32 s45, s45, s27"); A("s_lshl_b32 s45, s45, 2")
    A("s_add_u32 s44, s44, s45"); A(f"s_add_u32 s44, s44, {F_X:#x}")
    publish_flag(A, "s44", "s[28:31]", "s60", 4)
    A.label(lw)
    A(f"s_branch {N}_end")
    A.label(f"{N}_attn")
    A("s_sub_u32 s33, s33, 4")
    A("s_lshr_b32 s26, s25, 2"); A("s_sub_u32 s26, 7, s26")
    A("s_and_b32 s27, s25, 3"); A("s_lshl_b32 s40, s24, 2"); A("s_add_u32 s27, s27, s40")
    A("s_lshl_b32 s34, s26, 3")
    lw = A.uid(N)
    A("s_cmp_lg_u32 s33, 0"); A(f"s_cbranch_scc1 {lw}")
    A("s_lshr_b32 s40, s27, 3"); A("s_lshl_b32 s41, s26, 1")
    A("v_add_u32 v6, s41, v2")
    A("v_subrev_u32 v7, 2, v2"); A("v_and_b32 v7, 3, v7"); A("v_add_u32 v7, s41, v7"); A("v_subrev_u32 v7, 2, v7"); A("v_max_i32 v7, 0, v7")
    A("v_cmp_le_u32 vcc, 2, v2"); A("v_mov_b32 v8, s40"); A("s_nop 0"); A("v_cndmask_b32 v6, v6, v7, vcc")
    A("v_add_u32 v9, 4, v8"); A("v_cndmask_b32 v8, v8, v9, vcc")
    A("v_cmp_le_u32 vcc, 6, v2"); A("v_add_u32 v9, 4, v8"); A("s_nop 0"); A("v_cndmask_b32 v8, v8, v9, vcc")
    A("v_lshlrev_b32 v6, 7, v6"); A("v_lshl_add_u32 v6, v8, 2, v6"); A(f"v_add_u32 v6, {F_A:#x}, v6")
    poll_flags(A, 6, "s[28:31]", "s60", 7, 0x3ff)
    A.label(lw)
    lds_sync(A, 4, SY[3])
    A("s_lshl_b32 s36, s27, 16")
    A("s_add_u32 s8, s22, s36"); A("s_addc_u32 s9, s23, 0"); A(f"s_add_u32 s8, s8, {WS_K:#x}"); A("s_addc_u32 s9, s9, 0"); A("s_mov_b32 s10, 0x10000"); A("s_mov_b32 s11, 0x20000")
    A("s_add_u32 s12, s22, s36"); A("s_addc_u32 s13, s23, 0"); A(f"s_add_u32 s12, s12, {WS_V:#x}"); A("s_addc_u32 s13, s13, 0"); A("s_mov_b32 s14, 0x10000"); A("s_mov_b32 s15, 0x20000")
    A("v_lshlrev_b32 v3, 4, v2")
    A("s_lshl_b32 s37, s33, 2"); A("s_add_u32 s38, s34, s37"); A("s_sub_u32 s38, s38, 8"); A("s_lshl_b32 s38, s38, 10")
    A("s_lshl_b32 s37, s37, 10")
    A("s_mov_b32 s39, 0")
    for j in range(4):
        A(f"s_add_u32 s40, s38, {j*1024}")
        A("v_add_u32 v4, s40, v3")
        A(f"s_add_u32 m0, s37, {j*1024}"); A("s_nop 0")
        A(f"buffer_load_dwordx4 v4, s[8:11], s39 offen {OPTS['ld']} lds")
        A(f"s_add_u32 m0, s37, {j*1024 + L_V}"); A("s_nop 0")
        A(f"buffer_load_dwordx4 v4, s[12:15], s39 offen {OPTS['ld']} lds")
    VQ, VQ2 = 8, 152
    A("s_add_u32 s35, s34, s33")
    A("s_lshl_b32 s40, s35, 10"); A("s_add_u32 s40, s40, s36"); A(f"s_add_u32 s40, s40, {WS_Q:#x}")
    A(f"buffer_load_dwordx4 {v(VQ,4)}, v3, s[28:31], s40 offen {OPTS['ld']}")
    A("s_add_u32 s40, s40, 4096")
    A(f"buffer_load_dwordx4 {v(VQ2,4)}, v3, s[28:31], s40 offen {OPTS['ld']}")
    A("v_mov_b32 v5, 0x3f803f80"); A("v_and_b32 v6, 255, v0"); A("v_lshlrev_b32 v6, 2, v6"); A(f"ds_write_b32 v6, v5 offset:{L_ONES}")
    VKA, VVA, VST, VVB, VON = 6, 7, 12, 156, 157
    A("v_lshrrev_b32 v13, 5, v2"); A("v_lshlrev_b32 v14, 7, v13")
    A("v_bfe_u32 v15, v2, 1, 1"); A("v_lshl_add_u32 v14, v15, 6, v14")
    A("v_bfe_u32 v15, v2, 2, 2"); A("v_lshl_add_u32 v14, v15, 4, v14")
    A("v_and_b32 v15, 1, v2"); A("v_lshl_add_u32 v14, v15, 3, v14")
    A(f"v_add_u32 {v(VVB)}, {L_V}, v14")
    A("v_lshlrev_b32 v13, 7, v13"); A("v_xor_b32 v13, 128, v13"); A(f"v_add_u32 {v(VON)}, {L_ONES}, v13")
    A("v_bfe_u32 v15, v2, 4, 1"); A("v_cmp_eq_u32 s[44:45], 0, v15")
    A("v_mov_b32 v15, 1024")
    A(f"v_cndmask_b32 {v(VST)}, 0, v15, s[44:45]")
    KF = [16, 20]; SB = [32, 48]; M0, M8, NM, PP, VF, O, MX = 64, 80, 96, 112, [120, 128], 136, 24
    A.stamp(1)
    A("s_waitcnt vmcnt(0) lgkmcnt(0)")
    lds_sync(A, 4, SY[4], vA=158, vB=159)
    A.stamp(2)
    A("s_mov_b32 s62, 0")
    A.label(f"{N}_unit")
    A("s_sub_u32 s46, s35, s34"); A("s_cmp_ge_u32 s26, 1"); A("s_cselect_b32 s46, s46, 8"); A("s_lshl_b32 s46, s46, 10")
    A(f"v_add_u32 v14, s46, {v(VVB)}")
    A(f"v_cndmask_b32 {v(VVA)}, {v(VON)}, v14, s[44:45]")
    A(f"v_add_u32 {v(VKA)}, s46, v3")
    import attn
    attn.body(A, N, dict(VQ=VQ, VKA=VKA, VVA=VVA, VST=VST, KF=KF, SB=SB, M0=M0, M8=M8, NM=NM, PP=PP, VF=VF, O=O, MX=MX), sQG="s26", sQB="s35", slow_cond=1)
    A("s_lshl_b32 s40, s35, 5"); A("s_add_u32 s40, s40, s27"); A("s_lshl_b32 s40, s40, 10"); A(f"s_add_u32 s40, s40, {WS_O:#x}")
    A(f"buffer_store_dwordx4 v[28:31], v3, s[28:31], s40 offen {OPTS['wt']}")
    A("s_add_u32 s62, s62, 1"); A("s_cmp_ge_u32 s62, 2"); A(f"s_cbranch_scc1 {N}_attn_done")
    A("s_add_u32 s35, s35, 4")
    for k in range(4): A(f"v_mov_b32 {v(VQ+k)}, {v(VQ2+k)}")
    A(f"s_branch {N}_unit")
    A.label(f"{N}_attn_done")
    A("s_waitcnt vmcnt(0)")
    lds_sync(A, 4, SY[5])
    lw = A.uid(N)
    A("s_cmp_lg_u32 s33, 0"); A(f"s_cbranch_scc1 {lw}")
    A("s_lshl_b32 s44, s26, 7"); A("s_lshl_b32 s45, s27, 2"); A("s_add_u32 s44, s44, s45"); A(f"s_add_u32 s44, s44, {F_O:#x}")
    publish_flag(A, "s44", "s[28:31]", "s60", 4)
    A.label(lw)
    A.label(f"{N}_end")

def gen_P():
    A = Asm()
    A("s_cmp_ge_u32 s2, 256"); A("s_cbranch_scc1 kP_done")
    lz = A.uid("kP")
    A("v_cmp_gt_u32 vcc, 12, v0"); A("s_and_saveexec_b64 s[4:5], vcc"); A(f"s_cbranch_execz {lz}")
    A("v_lshlrev_b32 v1, 2, v0"); A(f"v_add_u32 v1, {SY[0]}, v1"); A("v_mov_b32 v2, 0"); A("ds_write_b32 v1, v2")
    A.label(lz)
    A("s_mov_b64 exec, s[4:5]")
    kA.gen_A(A=A)
    A("s_mov_b64 exec, -1"); A("s_waitcnt vmcnt(0) lgkmcnt(0)"); A("s_barrier")
    lw = A.uid("kP")
    A("s_cmp_lg_u32 s33, 0"); A(f"s_cbranch_scc1 {lw}")
    load_nonce(A, "s60", 4)
    A("s_lshl_b32 s44, s26, 7"); A("s_lshl_b32 s45, s27, 2"); A("s_add_u32 s44, s44, s45"); A(f"s_add_u32 s44, s44, {F_A:#x}")
    publish_flag(A, "s44", "s[28:31]", "s60", 4)
    A("s_lshl_b32 s44, s27, 7"); A("s_lshl_b32 s45, s26, 2"); A("s_add_u32 s44, s44, s45"); A(f"s_add_u32 s44, s44, {F_A2:#x}")
    publish_flag(A, "s44", "s[28:31]", "s60", 4)
    A.label(lw)
    A.stamp(7)
    phase_B(A)
    phase_barrier(A)
    kC.gen_C(A=A)
    phase_barrier(A)
    kD.gen_D(A=A)
    A.label("kP_done")
    A("s_endpgm")
    return A.text(), 256, LDS_P
```

```python
import sys
from common import *
HEADER = """; Kernarg layout (88 bytes, ptrs only, base s[0:1]):
"""
def add_stamps(name, text, kidx):
    pre = "    s_memtime s[66:67]\n" + "".join(f"    s_mov_b64 s[{68+2*i}:{69+2*i}], 0\n" for i in range(9)) + "    s_memrealtime s[92:93]\n    s_mov_b32 s91, s2\n    v_lshrrev_b32 v1, 6, v0\n    s_nop 0\n    v_readfirstlane_b32 s87, v1\n"
    n = [0]
    post = f"""    s_memtime s[62:63]
    s_waitcnt vmcnt(0)
    s_memtime s[60:61]
    s_memrealtime s[94:95]
    s_load_dwordx2 s[88:89], s[0:1], 80
    s_mov_b64 exec, 1
    s_waitcnt lgkmcnt(0)
    s_lshl_b32 s91, s91, 4
    s_add_u32 s91, s91, s87
    s_lshl_b32 s91, s91, 4
    s_add_u32 s91, s91, {WS_DBG + kidx*0x40000:#x}
    v_mov_b32 v0, s91
    v_mov_b32 v2, s92
    v_mov_b32 v3, s93
    v_mov_b32 v4, s94
    v_mov_b32 v5, s95
    global_store_dwordx4 v0, v[2:5], s[88:89]
    s_lshl_b32 s91, s91, 2
    s_add_u32 s91, s91, {(WS_DBG + 0x100000*(1+kidx) - 4*(WS_DBG + kidx*0x40000)) & 0xffffffff:#x}
    v_mov_b32 v0, s91
""" + "".join(f"    s_sub_u32 s{68+2*i}, s{68+2*i}, s66\n    v_mov_b32 v2, s{68+2*i}\n    global_store_dword v0, v2, s[88:89] offset:{4*i}\n" for i in range(9)) + """    s_sub_u32 s62, s62, s66
    v_mov_b32 v2, s62
    global_store_dword v0, v2, s[88:89] offset:36
    s_sub_u32 s60, s60, s66
    v_mov_b32 v2, s60
    global_store_dword v0, v2, s[88:89] offset:40
    s_endpgm
"""
    return pre + text.replace("    s_endpgm\n", post)

def build(kernels, stamps=False):
    if stamps:
        kernels = [(n, g, b, add_stamps(n, t, i), vg, l) for i, (n, g, b, t, vg, l) in enumerate(kernels)]
    s = HEADER
    for (name, grid, block, text, vgpr, lds) in kernels:
        s += f"; @launch kernel={name}_kernel grid=({grid},1,1) block=({block},1,1) lds={lds}\n"
    s += '.amdgcn_target "amdgcn-amd-amdhsa--gfx950"\n.text\n'
    seen = set()
    for (name, grid, block, text, vgpr, lds) in kernels:
        if name in seen: continue
        seen.add(name)
        s += kernel_head(name + "_kernel") + text
    s += "text_end_marker:\n    s_endpgm\n"
    s += '.section .rodata,"a"\n'
    seen = set()
    for (name, grid, block, text, vgpr, lds) in kernels:
        if name in seen: continue
        seen.add(name)
        s += kernel_desc(name + "_kernel", vgpr, 96)
    return s

def all_kernels(which="ABCD", stamps=False, **opts):
    Asm.STAMP = stamps
    import common
    common.OPTS.update(opts)
    K = []
    if which == "P":
        common.OPTS.update(persist=True, wt="sc1", ld="sc1")
        common.OPTS.update(opts)
        from pk import gen_P
        t, vg, lds = gen_P(); K.append(("kP", 256, 512, t, vg, lds))
        return K
    if "A" in which:
        from kA import gen_A
        t, vg, lds = gen_A(); K.append(("kA", 256, 512, t, vg, lds))
    if "B" in which:
        from kB import gen_B
        t, vg, lds = gen_B(); K.append(("kB", 256, 768, t, vg, lds))
    if "C" in which:
        from kC import gen_C
        t, vg, lds = gen_C(); K.append(("kC", 256, 512, t, vg, lds))
    if "D" in which:
        from kD import gen_D
        t, vg, lds = gen_D(); K.append(("kD", 256, 256, t, vg, lds))
    return K

if __name__ == "__main__":
    which = sys.argv[1] if len(sys.argv) > 1 else "ABCD"
    out = sys.argv[2] if len(sys.argv) > 2 else "out.s"
    open(out, "w").write(build(all_kernels(which)))
    import subprocess
    r = subprocess.run(["clang", "-x", "assembler", "-target", "amdgcn-amd-amdhsa", "-mcpu=gfx950", "-c", out, "-o", "out.o"], capture_output=True, text=True)
    print(r.stderr[:3000] if r.returncode else "assembled ok")
```
